```python
import torch

def _softmax(x, axis=-1):
    return torch.softmax(x, dim=axis)
def _gelu(x):
    return torch.nn.functional.gelu(x, approximate="tanh")
def _silu(x):
    return torch.nn.functional.silu(x)
def _sigmoid(x):
    return torch.sigmoid(x)
def _layernorm(x, axis=-1, eps=1e-5):
    m = x.mean(dim=axis, keepdim=True)
    v = x.var(dim=axis, keepdim=True, unbiased=False)
    return (x - m) / torch.sqrt(v + eps)
def _scatter_add(tgt, idx, src, axis=0):
    return tgt.clone().index_add_(axis, idx, src)
def _segment_sum(src, seg, n):
    out = torch.zeros((n,) + src.shape[1:], dtype=src.dtype)
    return out.index_add_(0, seg, src)
def _pad(x, pw):
    flat = tuple(v for pair in reversed(pw) for v in pair)
    return torch.nn.functional.pad(x, flat)

kernel_name = 'parallel_sum__compressed_kv_cla__glu_gated_geglu__prompt'

def setup_inputs():

    _w = (lambda a: (lambda t: t.to(torch.bfloat16) if t.is_floating_point() else t)(torch.as_tensor(a)))
    def _A_setup():
        B, H, Sq, Sk, D, M = 1, 32, 2048, 2048, 128, 512
        Dc = 4 * D
        return {
            "x": _w((lambda *s: torch.randn(*s, dtype=torch.bfloat16) * 0.05)(B, Sq, M)),
            "c_kv": _w((lambda *s: torch.randn(*s, dtype=torch.bfloat16) * 0.4)(B, Sk, Dc)),
            "w_q": _w((lambda *s: torch.randn(*s, dtype=torch.bfloat16) * 3.2)(M, H, D) * (M ** -0.5)),
            "w_uk": _w((lambda *s: torch.randn(*s, dtype=torch.bfloat16) * 3.2)(Dc, H, D) * (Dc ** -0.5)),
            "w_uv": _w((lambda *s: torch.randn(*s, dtype=torch.bfloat16) * 0.4)(Dc, H, D) * (Dc ** -0.5)),
            "w_o": _w((lambda *s: torch.randn(*s, dtype=torch.bfloat16) * 0.4)(H, D, M) * ((H * D) ** -0.5)),
        }
    _A_in = _A_setup()

    def _B_setup():
        B, S, Dm, Df = 1, 2048, 512, 1376
        return {
            "x": _w((lambda *s: torch.randn(*s, dtype=torch.bfloat16) * 0.05)(B, S, Dm)),
            "w_gate": _w((lambda *s: torch.randn(*s, dtype=torch.bfloat16) * 0.4)(Dm, Df) * (Dm ** -0.5)),
            "w_up": _w((lambda *s: torch.randn(*s, dtype=torch.bfloat16) * 0.4)(Dm, Df) * (Dm ** -0.5)),
            "w_down": _w((lambda *s: torch.randn(*s, dtype=torch.bfloat16) * 0.4)(Df, Dm) * (Df ** -0.5)),
        }
    _B_in = _B_setup()

    return {
        "A_x": _A_in["x"],
        "A_c_kv": _A_in["c_kv"],
        "A_w_q": _A_in["w_q"],
        "A_w_uk": _A_in["w_uk"],
        "A_w_uv": _A_in["w_uv"],
        "A_w_o": _A_in["w_o"],
        "B_x": _B_in["x"],
        "B_w_gate": _B_in["w_gate"],
        "B_w_up": _B_in["w_up"],
        "B_w_down": _B_in["w_down"],
    }

def reference(A_x, A_c_kv, A_w_q, A_w_uk, A_w_uv, A_w_o, B_x, B_w_gate, B_w_up, B_w_down):
    def _A_ref(x, c_kv, w_q, w_uk, w_uv, w_o):
        B, Sq, M = x.shape[0], x.shape[1], x.shape[2]
        Sk = c_kv.shape[1]
        H, D = w_q.shape[1], w_q.shape[2]
        q = torch.einsum("bqm,mhd->bhqd", x, w_q)
        k = torch.einsum("bkc,chd->bhkd", c_kv, w_uk)
        v = torch.einsum("bkc,chd->bhkd", c_kv, w_uv)
        scores = torch.einsum("bhqd,bhkd->bhqk", q, k) * (D ** -0.5)
        off = Sk - Sq
        qi = torch.arange(Sq)[:, None]
        kj = torch.arange(Sk)[None, :]
        cmask = kj <= (qi + off)
        scores = torch.where(cmask[None, None], scores, -1e9)
        p = _softmax(scores, axis=-1)
        ctx = torch.einsum("bhqk,bhkd->bhqd", p, v)
        return torch.einsum("bhqd,hdm->bqm", ctx, w_o)

    def _B_ref(x, w_gate, w_up, w_down):
        g = torch.einsum("bsd,df->bsf", x, w_gate)
        u = torch.einsum("bsd,df->bsf", x, w_up)
        h = _gelu(g) * u
        return torch.einsum("bsf,fd->bsd", h, w_down)

    x = A_x
    xn = _layernorm(x, axis=-1)
    return x + _A_ref(xn, A_c_kv, A_w_q, A_w_uk, A_w_uv, A_w_o) + _B_ref(xn, B_w_gate, B_w_up, B_w_down)
```

```python
import re
REG = re.compile(r'\b([vas])\[(\d+):(\d+)\]|\b([vas])(\d+)\b|\b(vcc|exec|m0|scc)\b')
TRANS = ('v_exp_f32', 'v_log_f32', 'v_rcp_f32', 'v_rsq_f32', 'v_sqrt_f32')

def regs(txt):
    out = []
    for m in REG.finditer(txt):
        if m.group(1): out += [(m.group(1), i) for i in range(int(m.group(2)), int(m.group(3)) + 1)]
        elif m.group(4): out.append((m.group(4), int(m.group(5))))
        else: out.append((m.group(6), 0))
    return out

class I:
    __slots__ = ('t', 'op', 'w', 'r', 'srcc', 'kind', 'passes')
    def __init__(s, t):
        s.t = t.strip(); p = s.t.split(None, 1); s.op = p[0]
        ops = [x.strip() for x in re.split(r',(?![^\[]*\])', p[1])] if len(p) > 1 else []
        s.srcc = []; s.passes = 0; op = s.op
        allr = lambda xs: [r for x in xs for r in regs(x)]
        if op.endswith(':') or op.startswith('.'): s.kind = 'label'; s.w = []; s.r = []
        elif op.startswith('v_mfma'):
            s.kind = 'mfma'; s.w = regs(ops[0]); s.r = allr(ops[1:]); s.srcc = regs(ops[3]); s.passes = 8 if '32x32' in op else 4
        elif op.startswith('ds_write'): s.kind = 'ds'; s.w = []; s.r = allr(ops)
        elif op.startswith('ds_'): s.kind = 'ds'; s.w = regs(ops[0]); s.r = allr(ops[1:])
        elif op.startswith('buffer_') or op.startswith('global_'):
            s.kind = 'vm'
            if 'store' in op or s.t.endswith(' lds') or 'atomic' in op or op in ('buffer_inv', 'buffer_wbl2'):
                s.w = regs(ops[0]) if ('atomic' in op and ' sc0' in s.t) else []
                s.r = allr(ops) + ([('m0', 0)] if s.t.endswith(' lds') else [])
            else: s.w = regs(ops[0]); s.r = allr(ops[1:])
        elif op.startswith('v_'):
            s.kind = 'valu'
            if op.startswith('v_permlane') or op.startswith('v_swap'): s.w = allr(ops); s.r = allr(ops)
            elif op.startswith('v_fmac') or op.startswith('v_dot2c'): s.w = regs(ops[0]); s.r = allr(ops)
            elif '_co_' in op: s.w = allr(ops[:2]); s.r = allr(ops[2:])
            elif op == 'v_nop': s.w = []; s.r = []
            else: s.w = regs(ops[0]); s.r = allr(ops[1:])
        elif op.startswith('s_load') or op.startswith('s_mem'): s.kind = 'smem'; s.w = regs(ops[0]); s.r = allr(ops[1:])
        elif op in ('s_waitcnt', 's_barrier', 's_nop', 's_endpgm', 's_setprio', 's_sleep') or op.startswith('s_cbranch') or op == 's_branch':
            s.kind = 'ctl'; s.w = []; s.r = []
        elif op.startswith('s_cmp'): s.kind = 'salu'; s.w = []; s.r = allr(ops)
        else: s.kind = 'salu'; s.w = regs(ops[0]); s.r = allr(ops[1:])
    def states(s):
        if s.kind == 'label': return 0
        if s.op == 's_nop': return int(s.t.split()[1], 0) + 1
        return 1

class Asm:
    def __init__(s):
        s.out = []; s.lg = []; s.vm = []; s.hist = []; s.nops = 0
    def raw(s, t):
        for l in t.split('\n'):
            if l.strip(): s.out.append(l)
    def _wait(s, vm=None, lg=None):
        t = 's_waitcnt'
        if vm is not None: t += f' vmcnt({min(vm, 63)})'; s.vm = s.vm[len(s.vm) - min(vm, 63):] if vm else []
        if lg is not None: t += f' lgkmcnt({min(lg, 15)})'; s.lg = s.lg[len(s.lg) - min(lg, 15):] if lg else []
        s._emit(I(t))
    def wait(s, vm=None, lg=None):
        if vm is not None and vm >= len(s.vm): vm = None
        if lg is not None and lg >= len(s.lg): lg = None
        if vm is not None or lg is not None: s._wait(vm, lg)
    def force_wait(s, vm=None, lg=None): s._wait(vm, lg)
    def fence(s):
        s._wait(0, 0); s._emit(I('s_nop 15')); s._emit(I('s_nop 3'))
    def _emit(s, i):
        s.out.append(i.t); s.hist.append(i)
        if len(s.hist) > 40: s.hist.pop(0)
    def need(s, i):
        n = 0; d = 0; R = set(i.r); W = set(i.w); T = R | W
        for p in reversed(s.hist):
            if d >= 20: break
            req = 0; pw = set(p.w)
            if p.kind == 'mfma':
                if i.kind == 'mfma':
                    if pw & set(i.srcc) and not (p.w == i.srcc and p.passes == i.passes): req = {4: 6, 8: 10}[p.passes]
                    if pw & (R - set(i.srcc)): req = {4: 8, 8: 12}[p.passes]
                    if pw & W and not pw & set(i.srcc): req = max(req, {4: 6, 8: 10}[p.passes])
                elif i.kind in ('valu', 'vm', 'ds'):
                    if pw & T: req = {4: 8, 8: 12}[p.passes]
                    elif set(p.srcc) & W: req = {4: 3, 8: 7}[p.passes]
            elif p.kind == 'valu':
                vw = {x for x in pw if x[0] in 'va' and len(x[0]) == 1}; sw = pw - vw
                if i.kind == 'mfma' and vw & R: req = 2
                if i.kind == 'valu':
                    if p.op in TRANS and vw & R: req = 1
                    if (i.op.startswith('v_permlane') or 'dpp' in i.t or 'row_' in i.t or 'quad_perm' in i.t) and vw & R: req = 2
                    if i.op.startswith('v_read') and vw & R: req = max(req, 1)
                    if sw & R: req = max(req, 4 if i.op.startswith('v_readlane') else 2)
                if i.kind == 'vm' and sw & R: req = 5
                if i.kind in ('salu', 'ctl') and (sw & R or (i.op.startswith('s_cbranch_vcc') and ('vcc', 0) in sw)): req = max(req, 1)
            elif p.kind == 'salu':
                if ('m0', 0) in pw and ('m0', 0) in R and i.kind == 'vm': req = 1
            elif p.kind == 'vm':
                if 'store' in p.op and ('x4' in p.op or 'x3' in p.op) and i.kind != 'vm' and set(regs(p.t.split(',')[0])) & W: req = 2
            n = max(n, req - d); d += p.states()
        return n
    def __call__(s, t):
        for l in t.split('\n'):
            l = l.split(';')[0].strip()
            if not l: continue
            i = I(l)
            if i.kind == 'label': s.out.append(i.t); continue
            if i.op == 's_waitcnt':
                m = re.search(r'vmcnt\((\d+)\)', l); v = int(m.group(1)) if m else None
                m = re.search(r'lgkmcnt\((\d+)\)', l); g = int(m.group(1)) if m else None
                s._wait(v, g); continue
            T = set(i.r) | set(i.w); v = g = None
            for k, e in enumerate(s.vm):
                if e & T and not (i.kind == 'vm' and e == set(i.w)): v = len(s.vm) - 1 - k
            for k, e in enumerate(s.lg):
                if e[0] & T: g = 0 if any(x[1] for x in s.lg) else len(s.lg) - 1 - k
            if v is not None or g is not None: s._wait(v, g)
            n = s.need(i)
            if n > 0: s._emit(I(f's_nop {n - 1}')); s.nops += 1
            s._emit(i)
            if i.kind == 'vm': s.vm.append(set(i.w))
            if i.kind == 'ds': s.lg.append((set(i.w), False))
            if i.kind == 'smem': s.lg.append((set(i.w), True))
    def text(s): return '\n'.join(s.out) + '\n'

def weave(a, mf, fill):
    fill = sorted(enumerate(fill), key=lambda x: (x[1][0], x[0])); k = 0
    while k < len(fill) and fill[k][1][0] < 0: a(fill[k][1][1]); k += 1
    for m, x in enumerate(mf):
        a(x)
        while k < len(fill) and fill[k][1][0] < m + 1: a(fill[k][1][1]); k += 1
    while k < len(fill): a(fill[k][1][1]); k += 1

def spread(lines, lo, hi):
    n = len(lines)
    return [(lo + (hi - lo) * (i + 0.5) / n, x) for i, x in enumerate(lines)] if n else []
```

```python
import sys
from gen_common import *
def build(kernels, path):
    ref = open(f"cdna_kernels/{NAME}.s.ref").read().split('\n')
    head = [l for l in ref if l.startswith('; Kernarg') or l.startswith(';   offset')]
    out = '\n'.join(head) + '\n'
    for n, a, lds in kernels: out += f"; @launch kernel={n} grid=(256,1,1) block=(256,1,1) lds={lds}\n"
    out += '.amdgcn_target "amdgcn-amd-amdhsa--gfx950"\n.text\n'
    for n, a, lds in kernels: out += a.text()
    out += '.section .rodata,"a"\n'
    for n, a, lds in kernels: out += desc(n)
    open(path, 'w').write(out)
if __name__ == "__main__":
    from gen_p1 import p1
    ks = [("p1_kernel", p1(), 163840)]
    try:
        from gen_p2 import p2
        ks.append(("p2_kernel", p2(), 163840))
        from gen_p3 import p3
        ks.append(("p3_kernel", p3(), 131072))
    except ImportError as e: print("partial:", e)
    build(ks, sys.argv[1] if len(sys.argv) > 1 else f"cdna_kernels/{NAME}.s")
    print([(n, len(a.out), a.nops) for n, a, _ in ks])
```

```python
from asmlib import *
NAME = "parallel_sum__compressed_kv_cla__glu_gated_geglu__prompt"
MB = 1 << 20
WS_XN, WS_KV, WS_QB, WS_TOK = 0, 2 * MB, 34 * MB, 42 * MB
TOKROW = 171 * 1024
WS_END = WS_TOK + 128 * TOKROW
KA = dict(x=0, ckv=8, wq=16, wuk=24, wuv=32, wo=40, wg=56, wu=64, wd=72, out=80, dbg=88, ws=96)
M16 = "v_mfma_f32_16x16x32_bf16"
M32 = "v_mfma_f32_32x32x16_bf16"
def vr(b, n=4): return f"v[{b}:{b+n-1}]"
def ar(b, n=4): return f"a[{b}:{b+n-1}]"

class A2(Asm):
    def __init__(s): super().__init__(); s.nvm = 0; s.tags = {}
    def _emit(s, i):
        super()._emit(i)
        if i.kind == 'vm': s.nvm += 1
    def tag(s, t): s.tags[t] = s.nvm
    def wait_tag(s, t): s.wait(vm=s.nvm - s.tags[t])
    def __call__(s, t):
        if callable(t): t(s)
        else: super().__call__(t)

def srd(a, d, src, size, off=0):
    if off: a(f"s_add_u32 s{d}, s{src}, {off}\ns_addc_u32 s{d+1}, s{src+1}, 0")
    else: a(f"s_mov_b32 s{d}, s{src}\ns_mov_b32 s{d+1}, s{src+1}")
    a(f"s_mov_b32 s{d+2}, {size}\ns_mov_b32 s{d+3}, 0x20000")

def header(a, name):
    a.raw(f".globl {name}\n.p2align 8\n.type {name},@function\n{name}:")
    a(f"s_cmp_ge_u32 s2, 256\ns_cbranch_scc1 END_{name}")

def ids(a):
    a("v_lshrrev_b32 v2, 6, v0\nv_and_b32 v1, 63, v0\nv_readfirstlane_b32 s20, v2")
    a("s_and_b32 s21, s2, 7\ns_lshl_b32 s21, s21, 2\ns_lshr_b32 s22, s2, 3\ns_and_b32 s23, s22, 3\ns_or_b32 s21, s21, s23\ns_lshr_b32 s22, s22, 2")

def desc(name):
    return f""".p2align 6
.amdhsa_kernel {name}
  .amdhsa_next_free_vgpr 512
  .amdhsa_next_free_sgpr 102
  .amdhsa_accum_offset 256
  .amdhsa_group_segment_fixed_size 0
  .amdhsa_kernarg_size 104
  .amdhsa_user_sgpr_count 2
  .amdhsa_user_sgpr_kernarg_segment_ptr 1
  .amdhsa_system_sgpr_workgroup_id_x 1
.end_amdhsa_kernel
"""

def wdma_voff(a, dst, stride, tmp):
    a(f"""v_lshrrev_b32 v{dst}, 5, v1
v_lshlrev_b32 v{dst}, 2, v{dst}
v_bfe_u32 v{tmp}, v1, 2, 2
v_add_u32 v{dst}, v{dst}, v{tmp}
s_lshl_b32 s23, s20, 3
v_add_u32 v{dst}, s23, v{dst}
s_mov_b32 s23, {stride}
v_mul_lo_u32 v{dst}, v{dst}, s23
v_bfe_u32 v{tmp}, v1, 4, 1
v_lshl_add_u32 v{dst}, v{tmp}, 6, v{dst}
s_and_b32 s23, s20, 1
s_lshl_b32 s23, s23, 1
v_and_b32 v{tmp}, 3, v1
v_xor_b32 v{tmp}, s23, v{tmp}
v_lshl_add_u32 v{dst}, v{tmp}, 4, v{dst}""")

def tr_addr(a, d0, d1, base, tmp):
    a(f"""v_lshrrev_b32 v{tmp}, 4, v1
v_lshlrev_b32 v{d0}, 10, v{tmp}
v_and_b32 v{tmp}, 1, v{tmp}
v_lshl_add_u32 v{d0}, v{tmp}, 5, v{d0}
v_bfe_u32 v{tmp}, v1, 2, 2
v_lshl_add_u32 v{d0}, v{tmp}, 6, v{d0}
v_and_b32 v{tmp}, 3, v1
v_lshl_add_u32 v{d0}, v{tmp}, 3, v{d0}
v_add_u32 v{d0}, {base}, v{d0}
v_xor_b32 v{d1}, 32, v{d0}""")

def tr_reads(dst, va, off, cb):
    o = off + (cb >> 1) * 256
    r = va[cb & 1]
    return [f"ds_read_b64_tr_b16 v[{dst}:{dst+1}], v{r} offset:{o}", f"ds_read_b64_tr_b16 v[{dst+2}:{dst+3}], v{r} offset:{o+512}"]

class Gemm:
    def __init__(s, a, stages, va, fr0=16, nfr=8, lead=4):
        s.a, s.st, s.va, s.fr0, s.nfr, s.lead = a, stages, va, fr0, nfr, lead
    def issue(s, k):
        def f(a):
            if k < len(s.st):
                for l in s.st[k]['dma']: a(l)
                a.tag(('w', k))
        return f
    def run(s, extra):
        mf = []; fill = list(extra); n = 0
        for k, st in enumerate(s.st):
            first = len(mf)
            def bar(a, k=k):
                a.wait_tag(('w', k)); a("s_barrier")
            p0 = first - 4 * s.lead - 0.6
            fill.append((p0, bar))
            if k >= 1:
                lines = s.st[k + 2]['dma'] if k + 2 < len(s.st) else []
                if lines:
                    grp = [lines[i:i + len(lines) // 4] for i in range(0, len(lines), len(lines) // 4)]
                    for gi, gl in enumerate(grp):
                        def f(a, gl=gl, last=(gi == 3), k=k):
                            for l in gl: a(l)
                            if last: a.tag(('w', k + 2))
                        fill.append((p0 + 2.1 + 5 * gi, f))
            for (blk, cb, ks, acc, wA) in st['frags']:
                fr = s.fr0 + 4 * (n % s.nfr); n += 1
                r0, r1 = tr_reads(fr, s.va, (k % 4) * 16384 + blk * 4096, cb)
                p = len(mf) - 4 * s.lead
                fill.append((p + 0.1, r0)); fill.append((p + 2.1, r1))
                for tb in range(4):
                    t = ar((tb * 16 + ks) * 4); w = vr(fr); d = vr(acc(tb)); c = d if ks else "0"
                    mf.append(f"{M16} {d}, {w}, {t}, {c}" if wA else f"{M16} {d}, {t}, {w}, {c}")
        weave(s.a, mf, fill)

def stamp(on, k):
    def f(a):
        if on and k == 0: a("s_memrealtime s[14:15]"); a.force_wait(lg=0); a("s_mov_b32 s65, s14")
        if on: a(f"s_memtime s[{76 + 2 * k if k < 5 else 86 + 2 * k}:{77 + 2 * k if k < 5 else 87 + 2 * k}]"); a.force_wait(lg=0)
    return f
def stamp_out(a, on, base, n):
    if not on: return
    a.raw(f"s_load_dwordx2 s[4:5], s[0:1], 96\ns_waitcnt lgkmcnt(0)\ns_add_u32 s4, s4, {base}\ns_addc_u32 s5, s5, 0\ns_mov_b32 s6, 0x100000\ns_mov_b32 s7, 0x20000\ns_lshl_b32 s23, s2, 2\ns_add_u32 s23, s23, s20\ns_lshl_b32 s23, s23, 6\nv_mov_b32 v2, 0")
    a.raw("s_waitcnt vmcnt(0)\ns_memrealtime s[14:15]\ns_waitcnt lgkmcnt(0)\nv_mov_b32 v3, s14\nv_mov_b32 v4, s65\nbuffer_store_dword v4, v2, s[4:7], s23 offen offset:56\nbuffer_store_dword v3, v2, s[4:7], s23 offen offset:60")
    for k in range(n): a.raw(f"v_mov_b32 v3, s{76 + 2 * k if k < 5 else 86 + 2 * k}\nbuffer_store_dword v3, v2, s[4:7], s23 offen offset:{4*k}")
```

```python
from gen_common import *

def wave_sum(a, x, t):
    for m in ("quad_perm:[1,0,3,2]", "quad_perm:[2,3,0,1]", "row_half_mirror", "row_mirror"):
        for r in x: a(f"v_add_f32_dpp v{r}, v{r}, v{r} {m} row_mask:0xf bank_mask:0xf")
    for op in ("v_permlane16_swap_b32", "v_permlane32_swap_b32"):
        for r, q in zip(x, t): a(f"v_mov_b32 v{q}, v{r}")
        for r, q in zip(x, t): a(f"{op} v{r}, v{q}")
        for r, q in zip(x, t): a(f"v_add_f32 v{r}, v{r}, v{q}")

def rbf(a, r):
    a(f"v_cvt_pk_bf16_f32 v{r}, v{r}, v{r}\nv_lshlrev_b32 v{r}, 16, v{r}")

def layernorm(a):
    X = [72, 80]; S = [88, 89]; T = [90, 91]; MU = [92, 93]
    for k in range(2):
        for q in range(4):
            a(f"v_lshlrev_b32 v{X[k]+2*q}, 16, v{64+4*k+q}\nv_and_b32 v{X[k]+2*q+1}, 0xffff0000, v{64+4*k+q}")
        a(f"v_add_f32 v{S[k]}, v{X[k]}, v{X[k]+1}")
        for e in range(2, 8): a(f"v_add_f32 v{S[k]}, v{S[k]}, v{X[k]+e}")
    wave_sum(a, S, T)
    for k in range(2):
        a(f"v_mul_f32 v{MU[k]}, 0x3b000000, v{S[k]}")
        a(f"v_sub_f32 v{T[k]}, v{X[k]}, v{MU[k]}\nv_mul_f32 v{S[k]}, v{T[k]}, v{T[k]}")
        for e in range(1, 8): a(f"v_sub_f32 v{T[k]}, v{X[k]+e}, v{MU[k]}\nv_fmac_f32 v{S[k]}, v{T[k]}, v{T[k]}")
    wave_sum(a, S, T)
    for k in range(2):
        a(f"v_mul_f32 v{S[k]}, 0x3b000000, v{S[k]}"); rbf(a, S[k])
        a(f"v_add_f32 v{S[k]}, 0x3727c5ac, v{S[k]}"); rbf(a, S[k])
        a(f"v_sqrt_f32 v{S[k]}, v{S[k]}"); rbf(a, S[k])
        a(f"v_rcp_f32 v{S[k]}, v{S[k]}"); rbf(a, MU[k])
        for e in range(8): a(f"v_sub_f32 v{X[k]+e}, v{X[k]+e}, v{MU[k]}")
        for q in range(4):
            r = 64 + 4 * k + q; x = X[k] + 2 * q
            a(f"v_cvt_pk_bf16_f32 v{r}, v{x}, v{x+1}\nv_lshlrev_b32 v{x}, 16, v{r}\nv_and_b32 v{x+1}, 0xffff0000, v{r}")
            a(f"v_mul_f32 v{x}, v{x}, v{S[k]}\nv_mul_f32 v{x+1}, v{x+1}, v{S[k]}\nv_cvt_pk_bf16_f32 v{r}, v{x}, v{x+1}")

def p1(name="p1_kernel", stamps=False):
    a = A2(); header(a, name)
    a("s_load_dwordx4 s[4:7], s[0:1], 0\ns_load_dwordx4 s[8:11], s[0:1], 24\ns_load_dwordx2 s[12:13], s[0:1], 96")
    ids(a); stamp(stamps, 0)(a)
    srd(a, 24, 4, 2 * MB); srd(a, 28, 6, 2 * MB); srd(a, 32, 8, 4 * MB); srd(a, 36, 10, 4 * MB)
    srd(a, 40, 12, 2 * MB, WS_XN); srd(a, 44, 12, 32 * MB, WS_KV)
    a("s_lshl_b32 s50, s2, 3\ns_lshl_b32 s51, s20, 1\ns_add_u32 s50, s50, s51\ns_lshl_b32 s51, s50, 10\nv_lshlrev_b32 v2, 4, v1")
    a("buffer_load_dwordx4 v[64:67], v2, s[24:27], s51 offen\nbuffer_load_dwordx4 v[68:71], v2, s[24:27], s51 offen offset:1024")
    a("v_lshrrev_b32 v3, 4, v1\nv_and_b32 v8, 15, v1")
    for jj in range(4):
        a(f"v_add_u32 v9, {4*jj}, v3\nv_xor_b32 v9, v9, v8\nv_lshlrev_b32 v9, 4, v9\nv_add_u32 v{4+jj}, {16*(jj>>1)+4*(jj&1)}, v3\nv_lshl_add_u32 v{4+jj}, v{4+jj}, 10, v9")
    a("s_lshl_b32 s52, s22, 18\ns_lshl_b32 s53, s20, 16\ns_add_u32 s52, s52, s53\ns_mul_i32 s53, s20, 24576")
    def tok_dma(u):
        L = []
        for j in range(8):
            L.append(f"s_add_u32 m0, s53, {(u % 3) * 8192 + j * 1024}")
            L.append(f"s_add_u32 s54, s52, {(u & 1) * 32768 + (j >> 2) * 8192 + (u >> 1) * 256}")
            L.append(f"buffer_load_dwordx4 v{4 + (j & 3)}, s[28:31], s54 offen lds")
        return L
    def tok_issue(u):
        def f(a):
            for l in tok_dma(u): a(l)
            a.tag(('t', u))
        return f
    wdma_voff(a, 10, 8192, 9)
    a("s_lshl_b32 s55, s21, 8\ns_lshl_b32 s56, s20, 10\ns_add_u32 s56, s56, 98304")
    def wdma(slot, blk, srdr, ks, half):
        return [f"s_add_u32 m0, s56, {slot * 16384 + blk * 4096}", f"s_add_u32 s57, s55, {ks * 32 * 8192 + half * 128}",
                f"buffer_load_dwordx4 v10, s[{srdr}:{srdr+3}], s57 offen lds"]
    XK, YV = 64, 192
    st = []
    for s_ in range(8):
        fr = []; dm = []
        for b in range(4):
            ks = 2 * s_ + (b >> 1); hf = b & 1
            dm += wdma(s_ % 4, b, 32, ks, hf)
            for cb in range(4): fr.append((b, cb, ks, (lambda tb, c=hf * 4 + cb: XK + (c * 4 + tb) * 4), True))
        st.append(dict(frags=fr, dma=dm))
    for hf in range(2):
        for s_ in range(4):
            fr = []; dm = []
            for b in range(4):
                ks = 4 * s_ + b
                dm += wdma(len(st) % 4, b, 36, ks, hf)
                for cb in range(4): fr.append((b, cb, ks, (lambda tb, c=cb, base=(YV if hf == 0 else XK): base + (c * 4 + tb) * 4), False))
            st.append(dict(frags=fr, dma=dm))
    g = Gemm(a, st, (11, 12))
    tok_issue(0)(a); tok_issue(1)(a); g.issue(0)(a); tok_issue(2)(a); g.issue(1)(a); g.issue(2)(a)
    tr_addr(a, 11, 12, 98304, 9)
    a("v_lshlrev_b32 v13, 8, v8\nv_xor_b32 v9, v3, v8\nv_lshl_add_u32 v13, v9, 4, v13\nv_add_u32 v13, s53, v13")
    a("v_xor_b32 v14, 64, v13\nv_xor_b32 v15, 128, v13\nv_xor_b32 v9, 192, v13")
    TA = [13, 14, 15, 9]
    layernorm(a)
    a("v_lshrrev_b32 v2, 2, v1\nv_lshlrev_b32 v2, 10, v2\nv_and_b32 v72, 3, v1\nv_lshl_add_u32 v2, v72, 8, v2")
    a("s_lshr_b32 s51, s50, 4\ns_lshl_b32 s51, s51, 14\ns_and_b32 s50, s50, 15\ns_lshl_b32 s50, s50, 4\ns_add_u32 s51, s51, s50")
    a("buffer_store_dwordx4 v[64:67], v2, s[40:43], s51 offen\nbuffer_store_dwordx4 v[68:71], v2, s[40:43], s51 offen offset:16")
    a("""v_lshrrev_b32 v72, 5, v1
v_bfe_u32 v73, v1, 4, 1
v_lshlrev_b32 v73, 9, v73
v_lshl_add_u32 v2, v72, 10, v73
v_lshl_add_u32 v3, v72, 12, v73
v_lshl_add_u32 v3, v8, 4, v3
v_lshrrev_b32 v72, 3, v8
v_lshl_add_u32 v2, v72, 8, v2
v_and_b32 v72, 7, v8
v_lshl_add_u32 v2, v72, 4, v2
s_lshl_b32 s58, s21, 20
s_lshl_b32 s59, s22, 17
s_add_u32 s58, s58, s59
s_lshl_b32 s59, s20, 15
s_add_u32 s58, s58, s59""")
    def tok_reads(u):
        return [f"ds_read_b128 {ar((((u & 1) * 2 + tl) * 16 + (u >> 1) * 4 + kl) * 4)}, v{TA[kl]} offset:{(u % 3) * 8192 + tl * 4096}" for kl in range(4) for tl in range(2)]
    for u in range(2):
        a.wait_tag(('t', u))
        for l in tok_reads(u): a(l)
    a.wait(lg=0); tok_issue(3)(a); tok_issue(4)(a)
    ex = []
    for u in range(2, 8):
        p = (u - 2) * 64 + 4
        ex.append((p, lambda a, u=u: a.wait_tag(('t', u))))
        ex += spread(tok_reads(u), p + 1, p + 25)
        if u + 3 < 8:
            ex.append((p + 34, "s_waitcnt lgkmcnt(2)"))
            L = tok_dma(u + 3)
            for j in range(8):
                def f(a, l=L[3 * j:3 * j + 3], last=(j == 7), u=u):
                    for x in l: a(x)
                    if last: a.tag(('t', u + 3))
                ex.append((p + 35 + 3 * j, f))
    def kstore():
        L = []; n = 0
        for tb in range(4):
            for dp in range(4):
                t = 48 + 4 * (n % 4); n += 1
                for hh in range(2):
                    b = XK + ((2 * dp + hh) * 4 + tb) * 4
                    L += [f"v_cvt_pk_bf16_f32 v{t+2*hh}, v{b}, v{b+1}", f"v_cvt_pk_bf16_f32 v{t+2*hh+1}, v{b+2}, v{b+3}"]
                L.append(f"s_add_u32 s59, s58, {(tb >> 1) * 16384 + (dp >> 1) * 4096}\nbuffer_store_dwordx4 {vr(t)}, v2, s[44:47], s59 offen offset:{(tb & 1) * 128 + (dp & 1) * 2048}")
        return L
    def vstore(base, hf):
        L = []; n = 0
        for tp in range(2):
            for cb in range(4):
                t = 48 + 4 * (n % 4); n += 1; c = hf * 4 + cb
                for hh in range(2):
                    b = base + (cb * 4 + 2 * tp + hh) * 4
                    L += [f"v_cvt_pk_bf16_f32 v{t+2*hh}, v{b}, v{b+1}", f"v_cvt_pk_bf16_f32 v{t+2*hh+1}, v{b+2}, v{b+3}"]
                L.append(f"s_add_u32 s59, s58, {tp * 16384 + 8192}\nbuffer_store_dwordx4 {vr(t)}, v3, s[44:47], s59 offen offset:{(c >> 1) * 1024 + (c & 1) * 256}")
        return L
    ex += spread(kstore(), 512 + 8, 768 - 8)
    ex += spread(vstore(YV, 0), 768 + 8, 1024 - 40)
    stamp(stamps, 1)(a)
    ex += [(256, stamp(stamps, 2)), (512, stamp(stamps, 3)), (768, stamp(stamps, 4))]
    g.run(ex)
    stamp(stamps, 5)(a)
    for l in vstore(XK, 1): a(l)
    if stamps: a.force_wait(vm=0)
    stamp(stamps, 6)(a); stamp_out(a, stamps, 0xf100000, 7)
    a.raw(f"END_{name}:\ns_endpgm")
    return a
if __name__ == "__main__":
    a = p1(); print(len(a.out), a.nops)
```

```python
from gen_common import *
import struct, math
def fb(x): return "0x%08x" % struct.unpack('<I', struct.pack('<f', x))[0]
LOG2E = math.log2(math.e)
S_ = (64, 96); P_ = (128, 144); NM = 160; E_ = 192
TS = 224; T_ = 228; L_ = 230; TM = 232; VQ = 234; TH = 236
VK, VV, VLK, VLV, VD = 2, 3, 4, 5, 6
SJ = (56, 57); SRCK, SRCV, WRK, WRV, KDST, VDST = 58, 59, 60, 61, 62, 63
THR, RET = 64, 86
def Sr(par, rho, i=0): return S_[par] + rho * 16 + i
def Pr(par, rho, f): return P_[par] + rho * 8 + f * 4
def Er(rho, i): return E_ + rho * 16 + i
def Oa(db, rho): return (db * 2 + rho) * 16
QKORD = [(r, d) for d in range(6) for r in range(2)] + [(0, 6), (0, 7), (1, 6), (1, 7)]

def qk_mf(par, cinit):
    return [f"{M32} {vr(Sr(par, r), 16)}, {ar(192 + 4 * d)}, {ar(128 + r * 32 + 4 * d)}, {vr(NM + 16 * r, 16) if (d == 0 and cinit) else vr(Sr(par, r), 16)}" for r, d in QKORD]
def pv_mf(par, order=None):
    order = order or [(f, db, r) for f in range(2) for db in range(4) for r in range(2)]
    return [f"{M32} {ar(Oa(db, r), 16)}, {ar(224 + 4 * (f * 4 + db))}, {vr(Pr(par, r, f))}, {ar(Oa(db, r), 16)}" for f, db, r in order]
def cvts(par, f):
    return [f"v_cvt_pk_bf16_f32 v{Pr(par, r, f) + q}, v{Er(r, 8 * f + 2 * q)}, v{Er(r, 8 * f + 2 * q + 1)}" for r in range(2) for q in range(4)]
def kreads(): return [f"ds_read_b128 {ar(192 + 4 * d)}, v{VK} offset:{d * 1024}" for d in range(8)]
def vreads(): return [f"ds_read_b128 {ar(224 + 4 * d)}, v{VV} offset:{d * 1024}" for d in range(8)]
def dmas(par):
    j = SJ[par]; L = []
    for src, wr, st in ((SRCV, WRV, 8192), (SRCK, WRK, 0)):
        for k in range(4):
            pre = ""
            if k == 0: pre = (f"s_xor_b32 s23, s{j}, 32768\ns_add_u32 m0, s23, s{VDST}\n" if st else f"s_add_u32 m0, s{j}, s{KDST}\n")
            post = f"\ns_add_u32 s{src}, s{src}, 32768\ns_cmp_eq_u32 s{src}, s{wr}\ns_cselect_b32 s{src}, {st}, s{src}\ns_cselect_b32 s{wr}, -1, s{wr}" if k == 3 else ""
            L.append(pre + f"buffer_load_dwordx4 v{VD}, s[40:43], s{src} offen offset:{k * 1024} lds" + post)
    return L
def slots(par):
    return f"s_add_u32 s{SJ[1-par]}, s{SJ[par]}, 16384\ns_and_b32 s{SJ[1-par]}, s{SJ[1-par]}, 0xffff\nv_add_u32 v{VK}, s{SJ[1-par]}, v{VLK}\nv_add_u32 v{VV}, s{SJ[par]}, v{VLV}"
def mask_init(par, src):
    L = []; n = 0
    for r in range(2):
        for i0 in range(0, 16, 2):
            c = [88 + 2 * ((n + k) % 4) for k in range(2)]; n += 2
            L.append("\n".join(f"v_cmp_le_i32 s[{c[k]}:{c[k]+1}], {((i0+k) & 3) + 8 * ((i0+k) >> 2)}, v{TH + r}" for k in range(2)))
            L.append("\n".join(f"v_cndmask_b32 v{Sr(par, r, i0+k)}, v{TM+1}, {src(r)}, s[{c[k]}:{c[k]+1}]" for k in range(2)))
    return L[:1] + [x for k in range(1, len(L) - 1, 2) for x in (L[k + 1], L[k])] + L[-1:]
def sm_fill(par, lo, hi):
    F = []; seq = [(r, 8 * f + i) for f in range(2) for r in range(2) for i in range(8)]
    st = (hi - lo) / 32.0
    for k, (r, i) in enumerate(seq):
        p = lo + k * st
        F.append((p, f"v_exp_f32 v{Er(r, i)}, v{Sr(par, r, i)}"))
        if i == 1: F.append((p + 1.5 * st, f"v_add_f32 v{T_ + r}, v{Er(r, 0)}, v{Er(r, 1)}"))
        elif i > 1: F.append((p + 1.5 * st, f"v_add_f32 v{T_ + r}, v{T_ + r}, v{Er(r, i)}"))
        if i & 1:
            if i < 8: F.append((p + 6.5 * st, f"v_cvt_pk_bf16_f32 v{Pr(par, r, 0) + i // 2}, v{Er(r, i - 1)}, v{Er(r, i)}"))
    F.append((hi + 1.2 * st, f"v_max_f32 v{TM}, v{T_}, v{T_ + 1}"))
    F.append((hi + 2.4 * st, f"v_cmp_lt_f32 vcc, s{THR}, v{TM}"))
    return F
def deferred(par, lo, hi):
    return spread([f"v_add_f32 v{L_}, v{L_}, v{T_}\nv_add_f32 v{L_+1}, v{L_+1}, v{T_+1}"] + cvts(par, 1), lo, hi)
stubs = []
def check(a, par, tag):
    a(f"s_cbranch_vccnz RX_{tag}"); a.raw(f"RR_{tag}:"); stubs.append((tag, par))
def body(a, par, tag, masked=False):
    F = [(-1, slots(par))] + deferred(1 - par, 0, 6)
    F.append((1.5, "s_waitcnt vmcnt(12)\ns_barrier"))
    F += spread(kreads(), 2, 14) + spread(vreads(), 17, 31) + spread(dmas(par), 3, 30)
    if masked:
        F.append((-0.5, f"v_subrev_u32 v{TH}, s67, v{VQ}\nv_subrev_u32 v{TH+1}, s67, v{VQ+1}\ns_add_u32 s67, s67, 64"))
        F += spread(mask_init(1 - par, lambda r: f"v{NM + 16 * r}"), 0, 15.9)
    F += sm_fill(par, 1.2, 29.0)
    weave(a, pv_mf(1 - par) + qk_mf(1 - par, not masked), F)
    check(a, par, tag)
def primed(fn, prev):
    t = A2(); body(t, prev, "dummy"); stubs.pop(); k = len(t.out); fn(t); return t, t.out[k:]
def rowmax(par):
    L = []
    for r in range(2):
        s = lambda i: f"v{Sr(par, r, i)}"; t = f"v{T_ + r}"
        L.append(f"v_max3_f32 {t}, {s(0)}, {s(1)}, {s(2)}")
        for i in range(3, 15, 2): L.append(f"v_max3_f32 {t}, {t}, {s(i)}, {s(i+1)}")
        L.append(f"v_max_f32 {t}, {t}, {s(15)}")
    for r in range(2): L.append(f"v_mov_b32 v{TS + r}, v{T_ + r}")
    for r in range(2): L.append(f"v_permlane32_swap_b32 v{T_ + r}, v{TS + r}")
    for r in range(2): L.append(f"v_max_f32 v{T_ + r}, v{T_ + r}, v{TS + r}")
    return L
def subm(par, r, reg): return [f"v_add_f32 v{Sr(par, r, i)}, v{Sr(par, r, i)}, v{reg}" for i in range(16)]
def rare(par):
    a = A2(); a.raw(f"RARE{par}:"); a("s_nop 15\ns_nop 15")
    for l in rowmax(par): a(l)
    for r in range(2):
        a(f"v_max_f32 v{T_ + r}, 0, v{T_ + r}\nv_sub_f32 v{TS + 2 * r}, 0, v{T_ + r}\nv_sub_f32 v{TS + 2 * r + 1}, 0, v{T_ + r}\nv_exp_f32 v{T_ + r}, v{TS + 2 * r}")
        for q in range(2):
            for l in subm(q, r, TS + 2 * r): a(l)
        for i in range(16): a(f"v_add_f32 v{NM + 16 * r + i}, v{NM + 16 * r + i}, v{TS + 2 * r}")
        a(f"v_mul_f32 v{L_ + r}, v{L_ + r}, v{T_ + r}")
        for db in range(4):
            for i in range(16): a(f"v_accvgpr_read_b32 v{E_ + i}, a{Oa(db, r) + i}")
            for i in range(16): a(f"v_mul_f32 v{E_ + i}, v{E_ + i}, v{T_ + r}")
            for i in range(16): a(f"v_accvgpr_write_b32 a{Oa(db, r) + i}, v{E_ + i}")
    for p, l in sorted(sm_fill(par, 0, 32), key=lambda x: x[0])[:-2]: a(l)
    a(f"s_nop 3\ns_setpc_b64 s[{RET}:{RET+1}]")
    return a.out

def p2(name="p2_kernel", stamps=False):
    a = A2(); header(a, name); del stubs[:]
    a("s_load_dwordx2 s[4:5], s[0:1], 16\ns_load_dwordx4 s[8:11], s[0:1], 56\ns_load_dwordx2 s[12:13], s[0:1], 96")
    ids(a)
    stamp(stamps, 0)(a)
    a("s_and_b32 s18, s20, 1\ns_lshr_b32 s19, s20, 1")
    srd(a, 24, 12, 2 * MB, WS_XN); srd(a, 28, 4, 4 * MB); srd(a, 32, 8, 512 * 2752); srd(a, 36, 10, 512 * 2752)
    srd(a, 44, 12, 8 * MB, WS_QB); srd(a, 48, 12, 128 * TOKROW, WS_TOK)
    a(f"s_lshl_b32 s23, s21, 20\ns_add_u32 s23, s23, {WS_KV}\ns_add_u32 s40, s12, s23\ns_addc_u32 s41, s13, 0\ns_sub_u32 s16, 15, s22\ns_add_u32 s42, s16, 1\ns_lshl_b32 s42, s42, 16\ns_mov_b32 s43, 0x20000")
    a("s_cmp_eq_u32 s19, 0\ns_cselect_b32 s17, s22, s16\ns_lshl_b32 s17, s17, 3\ns_lshl_b32 s23, s18, 2\ns_add_u32 s17, s17, s23")
    a("v_lshlrev_b32 v7, 4, v1\ns_lshl_b32 s52, s17, 14")
    wdma_voff(a, 10, 8192, 9); wdma_voff(a, 8, 2752, 9)
    a("s_mul_i32 s53, s21, 96\ns_lshl_b32 s54, s21, 6\ns_add_u32 s54, s54, 704\ns_cmp_lt_u32 s21, 22\ns_cselect_b32 s53, s53, s54\ns_cselect_b32 s14, 0, 0x7000000")
    a("s_lshl_b32 s55, s21, 8\ns_lshl_b32 s15, s20, 10\ns_add_u32 s15, s15, 98304")
    def wdma(slot, blk, sr, vo, base, off):
        return [f"s_add_u32 m0, s15, {slot * 16384 + blk * 4096}", f"s_add_u32 s23, s{base}, {off}", f"buffer_load_dwordx4 v{vo}, s[{sr}:{sr+3}], s23 offen lds"]
    GA, UA, QA, QB = 64, 112, 160, 64
    st = []
    for s_ in range(8):
        fr = []; dm = []
        for b in range(4):
            ks = 2 * s_ + (b >> 1); up = b & 1
            dm += wdma(s_ % 4, b, 36 if up else 32, 8, 53, ks * 32 * 2752)
            for cb in range(3): fr.append((b, cb, ks, (lambda tb, c=cb, base=(UA if up else GA): base + (c * 4 + tb) * 4), True))
        st.append(dict(frags=fr, dma=dm))
    for hf in range(2):
        for s_ in range(4):
            fr = []; dm = []
            for b in range(4):
                ks = 4 * s_ + b
                dm += wdma(len(st) % 4, b, 28, 10, 55, ks * 32 * 8192 + hf * 128)
                for cb in range(4): fr.append((b, cb, ks, (lambda tb, c=cb, base=(QB if hf else QA): base + (c * 4 + tb) * 4), True))
            st.append(dict(frags=fr, dma=dm))
    g = Gemm(a, st, (11, 12))
    def tok(ks0, ks1):
        for ks in range(ks0, ks1):
            for tb in range(4):
                a(f"s_add_u32 s23, s52, {tb * 16384 + (ks >> 2) * 4096}\nbuffer_load_dwordx4 {ar((tb * 16 + ks) * 4)}, v7, s[24:27], s23 offen offset:{(ks & 3) * 1024}")
    g.issue(0)(a); tok(0, 2); g.issue(1)(a); tok(2, 4); g.issue(2)(a); tok(4, 12)
    tr_addr(a, 11, 12, 98304, 9)
    a(f"""s_lshl_b32 s23, s19, 13
v_add_u32 v{VLK}, s23, v7
v_add_u32 v{VLV}, 0x10000, v{VLK}
s_lshl_b32 s23, s19, 13
s_lshl_b32 s3, s18, 12
s_add_u32 s{KDST}, s23, s3
s_add_u32 s{VDST}, s{KDST}, 0x10000
s_lshl_b32 s23, s19, 14
s_add_u32 s23, s23, s3
v_add_u32 v{VD}, s23, v7
s_add_u32 s{WRK}, s22, 1
s_lshl_b32 s{WRK}, s{WRK}, 16
s_add_u32 s{WRV}, s{WRK}, 8192
s_mov_b32 s{SRCK}, 0
s_mov_b32 s{SRCV}, 8192
s_mov_b32 s{THR}, {fb(2.0 ** 30)}
v_mov_b32 v{TM+1}, {fb(-1e30)}""")
    def kv_first(src, wr, stv, dst, slot):
        L = []
        for k in range(4):
            l = f"buffer_load_dwordx4 v{VD}, s[40:43], s{src} offen offset:{k * 1024} lds"
            if k == 0: l = f"s_add_u32 m0, s{dst}, {slot * 16384}\n" + l
            if k == 3: l += f"\ns_add_u32 s{src}, s{src}, 32768\ns_cmp_eq_u32 s{src}, s{wr}\ns_cselect_b32 s{src}, {stv}, s{src}\ns_cselect_b32 s{wr}, -1, s{wr}"
            L.append(l)
        return "\n".join(L)
    a(f"""s_mul_i32 s3, s17, {TOKROW}
s_lshr_b32 s23, s53, 5
v_lshrrev_b32 v15, 5, v1
v_lshlrev_b32 v15, 10, v15
v_bfe_u32 v9, v1, 4, 1
v_lshl_add_u32 v15, v9, 9, v15
v_and_b32 v9, 15, v1
v_lshl_add_u32 v15, v9, 4, v15""")
    for cb in range(3):
        a(f"s_add_u32 s54, s23, {cb}\ns_lshr_b32 s{70+cb}, s54, 1\ns_lshl_b32 s{70+cb}, s{70+cb}, 10\ns_and_b32 s54, s54, 1\ns_lshl_b32 s54, s54, 3\ns_add_u32 s{70+cb}, s{70+cb}, s54\ns_add_u32 s{70+cb}, s{70+cb}, s3")
    a(f"""s_add_u32 s72, s72, s14
s_lshl_b32 s23, s18, 14
s_add_u32 s54, s23, 32768
s_lshl_b32 s3, s2, 15
s_add_u32 s3, s3, s23
s_cmp_eq_u32 s19, 0
s_cselect_b32 s54, s54, 98304
s_cselect_b32 s73, 0x7000000, s3
v_add_u32 v14, s54, v15""")
    c0 = -2 * LOG2E * math.sqrt(2 / math.pi)
    for k, v in enumerate((c0, c0 * 0.044715, 1.0, LOG2E * 128 ** -0.5)): a(f"s_mov_b32 s{4+2*k}, {fb(v)}\ns_mov_b32 s{5+2*k}, {fb(v)}")
    a("v_mov_b32 v62, s4\nv_mov_b32 v63, s4")
    ex = [(8, lambda a: tok(12, 14)), (30, lambda a: tok(14, 16))]
    for k, (s_, w_, v_, d_, sl) in enumerate(((SRCK, WRK, 0, KDST, 0), (SRCV, WRV, 8192, VDST, 0), (SRCK, WRK, 0, KDST, 1), (SRCV, WRV, 8192, VDST, 1))):
        ex.append((48 * (k + 3) + 30.5, kv_first(s_, w_, v_, d_, sl)))
    def gelu():
        L = []; n = 0
        for cb in range(3):
            for tb in range(4):
                gq = GA + (cb * 4 + tb) * 4; uq = UA + (cb * 4 + tb) * 4; t = 48 + 6 * (n & 1); n += 1
                K4 = range(4)
                L += [f"v_mul_f32 v{t+k}, v{gq+k}, v{gq+k}" for k in K4]
                L += [f"v_fma_f32 v{t+k}, v{t+k}, s6, v62" for k in K4]
                L += [f"v_mul_f32 v{t+k}, v{t+k}, v{gq+k}" for k in K4]
                for k in K4: L += [f"v_exp_f32 v{t+k}, v{t+k}", f"v_mul_f32 v{gq+k}, v{gq+k}, v{uq+k}"]
                L += [f"v_add_f32 v{t+k}, 1.0, v{t+k}" for k in K4]
                L += [f"v_rcp_f32 v{t+k}, v{t+k}" for k in K4]
                L += [f"v_mul_f32 v{gq+k}, v{gq+k}, v{t+k}" for k in K4]
                L += [f"v_cvt_pk_bf16_f32 v{t+4}, v{gq}, v{gq+1}", f"v_cvt_pk_bf16_f32 v{t+5}, v{gq+2}, v{gq+3}"]
                L.append(f"s_add_u32 s23, s{70+cb}, {tb * TOKROW + 128 * 1024}\nbuffer_store_dwordx2 {vr(t+4, 2)}, v7, s[48:51], s23 offen")
        return L
    def qout(base, hf):
        L = []; n = 0
        for tb in range(4):
            for d2 in range(2):
                t = 48 + 4 * (n % 3); n += 1; off = (tb >> 1) * 8192 + (hf * 2 + d2) * 2048 + (tb & 1) * 256
                for hh in range(2):
                    b = base + ((2 * d2 + hh) * 4 + tb) * 4
                    L += [f"v_mul_f32 v{b+k}, s10, v{b+k}" for k in range(4)]
                    L += [f"v_cvt_pk_bf16_f32 v{t+2*hh+k}, v{b+2*k}, v{b+2*k+1}" for k in range(2)]
                L.append(f"ds_write_b128 v14, {vr(t)} offset:{off}")
                L.append(f"s_add_u32 s23, s73, {off & ~4095}\nbuffer_store_dwordx4 {vr(t)}, v15, s[44:47], s23 offen offset:{off & 4095}")
        return L
    ex += spread(gelu(), 384 + 6, 640 - 4)
    ex += spread(qout(QA, 0), 768 - 10, 896 - 8)
    ex += [(0, stamp(stamps, 5)), (384, stamp(stamps, 6)), (640, stamp(stamps, 7))]
    g.run(ex)
    stamp(stamps, 1)(a)
    for l in qout(QB, 1): a(l)
    a.force_wait(0, 0); a("s_barrier")
    a(f"s_lshl_b32 s23, s18, 14\ns_add_u32 s23, s23, 32768\ns_lshl_b32 s3, s19, 13\ns_add_u32 s54, s23, s3\nv_add_u32 v8, s54, v7\nv_xor_b32 v9, 0x2000, v8\nv_mov_b32 v{VK}, v{VLK}")
    for r in range(2):
        for d in range(8): a(f"ds_read_b128 {ar(128 + r * 32 + 4 * d)}, v{8 + r} offset:{d * 1024}")
    for l in kreads(): a(l)
    a(f"""v_and_b32 v8, 31, v1
v_lshrrev_b32 v9, 5, v1
v_lshlrev_b32 v9, 2, v9
v_sub_u32 v8, v8, v9
s_lshl_b32 s23, s18, 6
v_add_u32 v238, s23, v8
s_lshl_b32 s3, s19, 6
s_sub_u32 s23, s23, s3
s_add_u32 s23, s23, 32
v_add_u32 v239, s23, v8
s_mov_b32 s74, s22
s_mov_b32 s75, 0
s_mov_b32 s{SJ[0]}, 0
s_lshl_b32 s23, s19, 13
v_add_u32 v10, s23, v7
v_xor_b32 v11, 0x2000, v10
s_lshl_b32 s73, s2, 15
s_lshl_b32 s23, s18, 14
s_add_u32 s73, s73, s23
s_lshl_b32 s23, s20, 13
s_add_u32 s23, s23, 0x20000
v_add_u32 v12, s23, v7
v_xor_b32 v13, 0x4000, v12
v_lshlrev_b32 v14, 3, v1
s_lshl_b32 s23, s20, 9
s_add_u32 s23, s23, 0x10000
v_add_u32 v14, s23, v14
v_bfe_u32 v8, v1, 4, 1
s_mov_b32 s23, {TOKROW}
v_mul_lo_u32 v15, v8, s23
v_lshrrev_b32 v8, 5, v1
v_lshl_add_u32 v15, v8, 8, v15
v_and_b32 v8, 15, v1
v_lshl_add_u32 v15, v8, 4, v15""")
    a.force_wait(lg=0); a("s_barrier")
    a(kv_first(SRCK, WRK, 0, KDST, 2)); a(kv_first(SRCK, WRK, 0, KDST, 3))
    stamp(stamps, 2)(a)
    a.raw("QBLK:")
    a(f"s_lshl_b32 s23, s74, 7\nv_add_u32 v{VQ}, s23, v238\nv_add_u32 v{VQ+1}, s23, v239\ns_add_u32 s67, s23, 0")
    a(slots(0))
    a(f"v_mov_b32 v{TH}, v{VQ}\nv_mov_b32 v{TH+1}, v{VQ+1}")
    for l in mask_init(0, lambda r: "0"): a(l)
    a(f"v_subrev_u32 v{TH}, 64, v{VQ}\nv_subrev_u32 v{TH+1}, 64, v{VQ+1}")
    a.force_wait(vm=8); a("s_barrier")
    F = spread(mask_init(1, lambda r: "0"), 0, 15.9)
    kr = kreads()
    for d in range(8): F.append((max(i for i, (r, dd) in enumerate(QKORD) if dd == d) + 0.5, kr[d]))
    F += spread(dmas(0), 1, 30) + spread(vreads(), 17, 31)
    F += spread([f"v_accvgpr_write_b32 a{i}, 0" for i in range(128)], 0, 32)
    L = rowmax(0)
    for r in range(2):
        L.append(f"v_cmp_lt_f32 vcc, v{T_ + r}, v{TM}"); L.append(f"v_cndmask_b32 v{T_ + r}, v{T_ + r}, 0, vcc")
    for r in range(2): L += [f"v_sub_f32 v{NM + 16 * r + i}, 0, v{T_ + r}" for i in range(16)]
    for r in range(2): L += subm(0, r, NM + 16 * r)
    F += [(16.5, f"v_mov_b32 v{TM}, {fb(-1e20)}\nv_mov_b32 v{L_}, 0\nv_mov_b32 v{L_+1}, 0")] + spread(L, 17, 31.9)
    weave(a, qk_mf(0, False) + qk_mf(1, False), F)
    G = sorted(sm_fill(0, 0, 32) + spread(subm(1, 0, NM) + subm(1, 1, NM + 16), 8, 30), key=lambda x: x[0])
    for p, l in G: a(l)
    a.force_wait(lg=0)
    check(a, 0, "h")
    a("s_cmp_eq_u32 s74, 0\ns_cbranch_scc1 LAST\ns_sub_u32 s54, s74, 1\ns_cmp_eq_u32 s54, 0\ns_cbranch_scc1 MASKED")
    a.raw("LOOP:")
    t, o = primed(lambda t: (body(t, 1, "l1"), body(t, 0, "l0")), 0); a.out += o
    a.raw("s_sub_u32 s54, s54, 1\ns_cmp_lg_u32 s54, 0\ns_cbranch_scc1 LOOP\nMASKED:")
    t, o = primed(lambda t: (body(t, 1, "m1", True), body(t, 0, "m0", True)), 0); a.out += o
    a.raw("LAST:")
    def last(a):
        F = [(-1, slots(1))] + deferred(0, 0, 6) + [(1.5, "s_waitcnt vmcnt(12) lgkmcnt(0)\ns_barrier")]
        F += spread(kreads(), 2, 8) + spread(dmas(1), 3, 15.9)
        vrd = vreads()
        for k in range(8): F.append((2 * k + 1.6, vrd[k]))
        F += sm_fill(1, 1.2, 14.5)
        weave(a, pv_mf(0), F)
        check(a, 1, "t")
        F = [(-1, x) for p, x in deferred(1, 0, 1)[:1]]
        cv = cvts(1, 1); F += spread(cv[4:], -1, -0.1) + spread(cv[:4], 0, 3)
        for r in range(2):
            for d in range(8): F.append((0.5 + r * 4 + d * 0.5, f"buffer_load_dwordx4 {ar(128 + r * 32 + 4 * d)}, v{10 + r}, s[44:47], s73 offen offset:{(d & 3) * 1024}" if d < 4 else
                                         f"s_add_u32 s23, s73, 4096\nbuffer_load_dwordx4 {ar(128 + r * 32 + 4 * d)}, v{10 + r}, s[44:47], s23 offen offset:{(d & 3) * 1024}"))
        L = []
        for r in range(2): L.append(f"v_mov_b32 v{TS + r}, v{L_ + r}")
        for r in range(2): L.append(f"v_permlane32_swap_b32 v{L_ + r}, v{TS + r}")
        for r in range(2): L.append(f"v_add_f32 v{TS + 2 * r + 1}, v{L_ + r}, v{TS + r}" if r else f"v_add_f32 v{L_}, v{L_}, v{TS}")
        L += [f"v_sub_f32 v{T_}, 0, v{NM}", f"v_sub_f32 v{TS + 2}, 0, v{NM + 16}", f"v_cmp_lt_f32 vcc, 0, v{L_}", f"v_cndmask_b32 v{T_}, v{TM+1}, v{T_}, vcc",
              f"v_cmp_lt_f32 vcc, 0, v{TS + 3}", f"v_cndmask_b32 v{TS + 2}, v{TM+1}, v{TS + 2}, vcc",
              f"s_xor_b32 s23, s{SJ[0]}, 32768\nv_add_u32 v8, s23, v14", f"ds_write_b64 v8, {vr(TS + 2, 2)}", "v_xor_b32 v8, 0x400, v8"]
        F += spread(L, 1, 7.9)
        L = []
        for db in range(4):
            for f in range(2):
                e = E_ + 8 * ((db * 2 + f) & 3); pk = 64 + 4 * (db * 2 + f)
                L += [f"v_accvgpr_read_b32 v{e + i}, a{Oa(db, 1) + 8 * f + i}" for i in range(8)]
                L += [f"v_cvt_pk_bf16_f32 v{pk + q}, v{e + 2 * q}, v{e + 2 * q + 1}" for q in range(4)]
                L.append(f"ds_write_b128 v12, {vr(pk)} offset:{(db * 2 + f) * 1024}")
        F += spread(L, 8.5, 17)
        weave(a, pv_mf(1, [(f, db, 1) for db in range(4) for f in range(2)] + [(f, db, 0) for db in range(4) for f in range(2)]), F)
        a.force_wait(lg=0); a("s_barrier")
        a(f"ds_read_b64 {vr(TS, 2)}, v8")
        for k in range(8): a(f"ds_read_b128 {vr(96 + 4 * k)}, v13 offset:{k * 1024}")
        a(f"""v_max_f32 v{TM}, v{T_}, v{TS}
v_sub_f32 v{T_}, v{T_}, v{TM}
v_sub_f32 v{TS}, v{TS}, v{TM}
v_exp_f32 v{T_}, v{T_}
v_exp_f32 v{TS}, v{TS}
v_mul_f32 v{L_}, v{L_}, v{T_}
v_fmac_f32 v{L_}, v{TS}, v{TS+1}
v_rcp_f32 v{L_}, v{L_}
v_mul_f32 v{T_}, v{T_}, v{L_}
v_mul_f32 v{TS}, v{TS}, v{L_}
v_mov_b32 v{T_+1}, v{T_}
v_mov_b32 v{TS+1}, v{TS}
s_lshl_b32 s23, s74, 3
s_lshl_b32 s3, s20, 1
s_and_b32 s3, s3, 2
s_or_b32 s3, s3, s19
s_lshl_b32 s3, s3, 1
s_add_u32 s23, s23, s3
s_mul_i32 s23, s23, {TOKROW}
s_lshl_b32 s3, s21, 12
s_add_u32 s3, s3, s23""")
        for k in range(8):
            db, f = k >> 1, k & 1; e = E_ + 16 * (k & 1); pk = 64 + 4 * k
            for i in range(8): a(f"v_accvgpr_read_b32 v{e + i}, a{Oa(db, 0) + 8 * f + i}")
            for q in range(4): a(f"v_lshlrev_b32 v{e + 8 + 2 * q}, 16, v{96 + 4 * k + q}\nv_and_b32 v{e + 9 + 2 * q}, 0xffff0000, v{96 + 4 * k + q}")
            for q in range(4): a(f"v_pk_mul_f32 {vr(e + 2 * q, 2)}, {vr(e + 2 * q, 2)}, {vr(T_, 2)}")
            for q in range(4): a(f"v_pk_fma_f32 {vr(e + 2 * q, 2)}, {vr(e + 8 + 2 * q, 2)}, {vr(TS, 2)}, {vr(e + 2 * q, 2)}")
            for q in range(4): a(f"v_cvt_pk_bf16_f32 v{pk + q}, v{e + 2 * q}, v{e + 2 * q + 1}")
            a(f"buffer_store_dwordx4 {vr(pk)}, v15, s[48:51], s3 offen offset:{db * 1024 + f * 512}")
    t, o = primed(last, 0); a.out += o
    if stamps: a.raw("s_cmp_eq_u32 s75, 0\ns_cbranch_scc0 ST4\ns_memtime s[82:83]\nST4:\ns_memtime s[84:85]\ns_waitcnt lgkmcnt(0)")
    a.raw("s_nop 1\ns_mov_b32 s74, s16\ns_add_u32 s75, s75, 1\ns_cmp_eq_u32 s75, 1\ns_cbranch_scc1 QBLK")
    stamp_out(a, stamps, 0xf000000, 8)
    a.raw(f"END_{name}:\ns_endpgm")
    for tag, par in stubs: a.raw(f"RX_{tag}:\ns_call_b64 s[{RET}:{RET+1}], RARE{par}\ns_branch RR_{tag}")
    for par in range(2): a.out += rare(par)
    return a
if __name__ == "__main__":
    a = p2(); print(len(a.out), a.nops)
```

```python
from gen_common import *
LDS = 131072
def p3(name="p3_kernel", stamps=False):
    a = A2(); header(a, name)
    a("s_load_dwordx2 s[4:5], s[0:1], 0\ns_load_dwordx2 s[6:7], s[0:1], 40\ns_load_dwordx4 s[8:11], s[0:1], 72\ns_load_dwordx2 s[12:13], s[0:1], 96")
    ids(a); stamp(stamps, 0)(a)
    a("v_lshrrev_b32 v12, 5, v1\nv_bfe_u32 v13, v1, 2, 2\nv_bfe_u32 v14, v1, 4, 1\nv_and_b32 v15, 3, v1\nv_lshlrev_b32 v14, 6, v14\nv_lshlrev_b32 v2, 4, v1")
    a("v_lshl_add_u32 v16, v12, 3, v13\nv_lshl_add_u32 v17, v12, 4, v13")
    for g in range(4):
        a(f"v_xor_b32 v18, {2 * (g & 1)}, v15\nv_lshl_add_u32 v18, v18, 4, v14")
        a(f"v_add_u32 v{4+g}, {16 * (g >> 1) + 4 * (g & 1) - g}, v16\nv_lshl_add_u32 v{4+g}, v{4+g}, 10, v18")
        a(f"v_add_u32 v{8+g}, {3 * g}, v17\nv_lshl_add_u32 v{8+g}, v{8+g}, 10, v18")
    srd(a, 24, 4, 2 * MB); srd(a, 28, 6, 4 * MB); srd(a, 32, 8, 1376 * 1024); srd(a, 36, 10, 2 * MB); srd(a, 40, 12, 128 * TOKROW, WS_TOK)
    a(f"s_lshl_b32 s50, s20, 15\ns_lshl_b32 s23, s22, 7\ns_lshl_b32 s51, s20, 20\ns_add_u32 s51, s51, s23\ns_mul_i32 s52, s20, {11 * 32768}\ns_add_u32 s52, s52, s23")
    a(f"s_mul_i32 s3, s21, {4 * TOKROW}\ns_add_u32 s54, s3, s50\ns_mul_i32 s58, s20, {11 * 1024}\ns_add_u32 s58, s58, s3\ns_add_u32 s58, s58, {128 * 1024}")
    for tb in range(1, 4): a(f"s_add_u32 s{54+tb}, s54, {tb * TOKROW}\ns_add_u32 s{58+tb}, s58, {tb * TOKROW}")
    def loads(u):
        if u > 42: return []
        H = u >= 32; k = u - 32 if H else u; L = []
        sw, vo, sr, stk = (52, 8, 32, 58) if H else (51, 4, 28, 54)
        for g in range(4):
            l = f"buffer_load_dwordx4 v{vo+g}, s[{sr}:{sr+3}], s{sw} offen offset:{g * 1024} lds"
            if g == 0: l = f"s_add_u32 m0, s50, {(u % 8) * 4096}\n" + l
            if g == 3: l += f"\ns_add_u32 s{sw}, s{sw}, 32768"
            L.append(l)
            l = f"buffer_load_dwordx4 {ar(((u % 8) * 4 + g) * 4)}, v2, s[40:43], s{stk+g} offen offset:{(k & 3) * 1024}"
            if k & 3 == 3: l += f"\ns_add_u32 s{stk+g}, s{stk+g}, 4096"
            L.append(l)
        return L
    for u in range(7):
        for l in loads(u): a(l)
    tr_addr(a, 12, 13, "s50", 14)
    a("v_and_b32 v14, 15, v1\nv_lshrrev_b32 v15, 4, v1\nv_lshlrev_b32 v3, 10, v14\nv_lshl_add_u32 v3, v15, 5, v3\nv_lshlrev_b32 v14, 4, v14\nv_lshl_add_u32 v14, v15, 10, v14")
    a("s_lshl_b32 s62, s21, 16\ns_lshl_b32 s23, s20, 14\ns_add_u32 s62, s62, s23\ns_lshl_b32 s23, s22, 7\ns_add_u32 s62, s62, s23\ns_lshl_b32 s23, s20, 12\nv_add_u32 v14, s23, v14\nv_add_u32 v15, s50, v2")
    ACC = 64
    def trs(s): return [l for cb in range(4) for l in tr_reads(16 + 16 * (s & 1) + 4 * cb, (12, 13), (s % 8) * 4096, cb)]
    def step(a, s, first=False):
        mf = [f"{M16} {vr(ACC + (cb * 4 + tb) * 4)}, {vr(16 + 16 * (s & 1) + 4 * cb)}, {ar(((s % 8) * 4 + tb) * 4)}, {'0' if first else vr(ACC + (cb * 4 + tb) * 4)}" for cb in range(4) for tb in range(4)]
        F = []
        if s < 42:
            F.append((0.5, f"s_waitcnt vmcnt({8 * (min(s + 6, 42) - s - 1) + (2 if s >= 38 else 0)})"))
            F += spread(trs(s + 1), 1, 13)
        F += spread(loads(s + 7), 1, 16)
        if s == 37: F.append((15.5, "buffer_load_dwordx4 v[48:51], v3, s[24:27], s62 offen\nbuffer_load_dwordx4 v[52:55], v3, s[24:27], s62 offen offset:16"))
        a.vm = []
        weave(a, mf, F)
    a.force_wait(vm=48)
    for l in trs(0): a(l)
    stamp(stamps, 1)(a)
    step(a, 0, True)
    for s in range(1, 8): step(a, s)
    a("s_mov_b32 s63, 2"); a.raw("P3L:")
    for s in range(8, 16): step(a, s)
    a("s_sub_u32 s63, s63, 1\ns_cmp_lg_u32 s63, 0\ns_cbranch_scc1 P3L")
    stamp(stamps, 2)(a)
    for s in range(24, 43): step(a, s)
    stamp(stamps, 3)(a)
    for tb in range(4):
        for cb in range(4): a(f"ds_write_b128 v15, {vr(ACC + (cb * 4 + tb) * 4)} offset:{tb * 4096 + cb * 1024}")
    a.force_wait(0, 0); a("s_barrier")
    a("v_add_u32 v16, 0x10000, v14")
    for w in range(4):
        for g in range(4): a(f"ds_read_b128 {vr(128 + (w * 4 + g) * 4)}, v{14 if w < 2 else 16} offset:{(w & 1) * 32768 + g * 256}")
    for q in range(8): a(f"v_lshlrev_b32 v{64 + 2 * q}, 16, v{48 + q}\nv_and_b32 v{65 + 2 * q}, 0xffff0000, v{48 + q}")
    for w in range(4):
        for q in range(8): a(f"v_pk_add_f32 {vr(64 + 2 * q, 2)}, {vr(64 + 2 * q, 2)}, {vr(128 + w * 16 + 2 * q, 2)}")
    for q in range(8): a(f"v_cvt_pk_bf16_f32 v{48 + q}, v{64 + 2 * q}, v{65 + 2 * q}")
    a("buffer_store_dwordx4 v[48:51], v3, s[36:39], s62 offen\nbuffer_store_dwordx4 v[52:55], v3, s[36:39], s62 offen offset:16")
    stamp(stamps, 4)(a); stamp_out(a, stamps, 0xf200000, 5)
    a.raw(f"END_{name}:\ns_endpgm")
    return a
```

```python
import sys
from gen import *
import gen_p1, gen_p2
def mk(path, st=True, n=3, k1={}, k2={}, k3={}):
    ks = [("p1_kernel", gen_p1.p1(stamps=st, **k1), 163840), ("p2_kernel", gen_p2.p2(stamps=st, **k2), 163840)]
    if n > 2:
        import gen_p3
        ks.append(("p3_kernel", gen_p3.p3(stamps=st, **k3), gen_p3.LDS))
    build(ks, path)
if __name__ == "__main__": mk(sys.argv[1], True, int(sys.argv[2]))
```

```python
from gen_common import *

def wave_sum(a, x, t):
    for m in ("quad_perm:[1,0,3,2]", "quad_perm:[2,3,0,1]", "row_half_mirror", "row_mirror"):
        for r in x: a(f"v_add_f32_dpp v{r}, v{r}, v{r} {m} row_mask:0xf bank_mask:0xf")
    for op in ("v_permlane16_swap_b32", "v_permlane32_swap_b32"):
        for r, q in zip(x, t): a(f"v_mov_b32 v{q}, v{r}")
        for r, q in zip(x, t): a(f"{op} v{r}, v{q}")
        for r, q in zip(x, t): a(f"v_add_f32 v{r}, v{r}, v{q}")

def rbf(a, r):
    a(f"v_cvt_pk_bf16_f32 v{r}, v{r}, v{r}\nv_lshlrev_b32 v{r}, 16, v{r}")

def layernorm(a):
    X = [72, 80]; S = [88, 89]; T = [90, 91]; MU = [92, 93]
    for k in range(2):
        for q in range(4):
            a(f"v_lshlrev_b32 v{X[k]+2*q}, 16, v{64+4*k+q}\nv_and_b32 v{X[k]+2*q+1}, 0xffff0000, v{64+4*k+q}")
        a(f"v_add_f32 v{S[k]}, v{X[k]}, v{X[k]+1}")
        for e in range(2, 8): a(f"v_add_f32 v{S[k]}, v{S[k]}, v{X[k]+e}")
    wave_sum(a, S, T)
    for k in range(2):
        a(f"v_mul_f32 v{MU[k]}, 0x3b000000, v{S[k]}")
        a(f"v_sub_f32 v{T[k]}, v{X[k]}, v{MU[k]}\nv_mul_f32 v{S[k]}, v{T[k]}, v{T[k]}")
        for e in range(1, 8): a(f"v_sub_f32 v{T[k]}, v{X[k]+e}, v{MU[k]}\nv_fmac_f32 v{S[k]}, v{T[k]}, v{T[k]}")
    wave_sum(a, S, T)
    for k in range(2):
        a(f"v_mul_f32 v{S[k]}, 0x3b000000, v{S[k]}"); rbf(a, S[k])
        a(f"v_add_f32 v{S[k]}, 0x3727c5ac, v{S[k]}"); rbf(a, S[k])
        a(f"v_sqrt_f32 v{S[k]}, v{S[k]}"); rbf(a, S[k])
        a(f"v_rcp_f32 v{S[k]}, v{S[k]}"); rbf(a, MU[k])
        for e in range(8): a(f"v_sub_f32 v{X[k]+e}, v{X[k]+e}, v{MU[k]}")
        for q in range(4):
            r = 64 + 4 * k + q; x = X[k] + 2 * q
            a(f"v_cvt_pk_bf16_f32 v{r}, v{x}, v{x+1}\nv_lshlrev_b32 v{x}, 16, v{r}\nv_and_b32 v{x+1}, 0xffff0000, v{r}")
            a(f"v_mul_f32 v{x}, v{x}, v{S[k]}\nv_mul_f32 v{x+1}, v{x+1}, v{S[k]}\nv_cvt_pk_bf16_f32 v{r}, v{x}, v{x+1}")

def p1(name="p1_kernel", stamps=False, st=""):
    a = A2(); header(a, name)
    a("s_load_dwordx4 s[4:7], s[0:1], 0\ns_load_dwordx4 s[8:11], s[0:1], 24\ns_load_dwordx2 s[12:13], s[0:1], 96")
    ids(a); stamp(stamps, 0)(a)
    srd(a, 24, 4, 2 * MB); srd(a, 28, 6, 2 * MB); srd(a, 32, 8, 4 * MB); srd(a, 36, 10, 4 * MB)
    srd(a, 40, 12, 2 * MB, WS_XN); srd(a, 44, 12, 32 * MB, WS_KV)
    a("s_lshl_b32 s50, s2, 3\ns_lshl_b32 s51, s20, 1\ns_add_u32 s50, s50, s51\ns_lshl_b32 s51, s50, 10\nv_lshlrev_b32 v2, 4, v1")
    a("buffer_load_dwordx4 v[64:67], v2, s[24:27], s51 offen\nbuffer_load_dwordx4 v[68:71], v2, s[24:27], s51 offen offset:1024")
    a("v_lshrrev_b32 v3, 4, v1\nv_and_b32 v8, 15, v1")
    for jj in range(4):
        a(f"v_add_u32 v9, {4*jj}, v3\nv_xor_b32 v9, v9, v8\nv_lshlrev_b32 v9, 4, v9\nv_add_u32 v{4+jj}, {16*(jj>>1)+4*(jj&1)}, v3\nv_lshl_add_u32 v{4+jj}, v{4+jj}, 10, v9")
    a("s_lshl_b32 s52, s22, 18\ns_lshl_b32 s53, s20, 16\ns_add_u32 s52, s52, s53\ns_mul_i32 s53, s20, 24576")
    def tok_dma(u):
        L = []
        for j in range(8):
            L.append(f"s_add_u32 m0, s53, {(u % 3) * 8192 + j * 1024}")
            L.append(f"s_add_u32 s54, s52, {(u & 1) * 32768 + (j >> 2) * 8192 + (u >> 1) * 256}")
            L.append(f"buffer_load_dwordx4 v{4 + (j & 3)}, s[28:31], s54 offen lds")
        return L
    def tok_issue(u):
        def f(a):
            for l in tok_dma(u): a(l)
            a.tag(('t', u))
        return f
    wdma_voff(a, 10, 8192, 9)
    a("s_lshl_b32 s55, s21, 8\ns_lshl_b32 s56, s20, 10\ns_add_u32 s56, s56, 98304")
    def wdma(slot, blk, srdr, ks, half):
        return [f"s_add_u32 m0, s56, {slot * 16384 + blk * 4096}", f"s_add_u32 s57, s55, {ks * 32 * 8192 + half * 128}",
                f"buffer_load_dwordx4 v10, s[{srdr}:{srdr+3}], s57 offen lds"]
    XK, YV = 64, 192 - (1 if stamps else 0) * 0
    stg = []
    for s_ in range(8):
        fr = []; dm = []
        for b in range(4):
            ks = 2 * s_ + (b >> 1); hf = b & 1
            dm += wdma(s_ % 4, b, 32, ks, hf)
            for cb in range(4): fr.append((b, cb, ks, (lambda tb, c=hf * 4 + cb: XK + (c * 4 + tb) * 4), True))
        stg.append(dict(frags=fr, dma=dm))
    for hf in range(2):
        for s_ in range(4):
            fr = []; dm = []
            for b in range(4):
                ks = 4 * s_ + b
                dm += wdma(len(stg) % 4, b, 36, ks, hf)
                for cb in range(4): fr.append((b, cb, ks, (lambda tb, c=cb, base=(YV if hf == 0 else XK): base + (c * 4 + tb) * 4), False))
            stg.append(dict(frags=fr, dma=dm))
    g = Gemm(a, stg, (11, 12))
    tok_issue(0)(a); tok_issue(1)(a); g.issue(0)(a); tok_issue(2)(a); g.issue(1)(a); g.issue(2)(a)
    tr_addr(a, 11, 12, 98304, 9)
    a("v_lshlrev_b32 v13, 8, v8\nv_xor_b32 v9, v3, v8\nv_lshl_add_u32 v13, v9, 4, v13\nv_add_u32 v13, s53, v13")
    a("v_xor_b32 v14, 64, v13\nv_xor_b32 v15, 128, v13\nv_xor_b32 v9, 192, v13")
    TA = [13, 14, 15, 9]
    layernorm(a)
    a("v_lshrrev_b32 v2, 2, v1\nv_lshlrev_b32 v2, 10, v2\nv_and_b32 v72, 3, v1\nv_lshl_add_u32 v2, v72, 8, v2")
    a("s_lshr_b32 s51, s50, 4\ns_lshl_b32 s51, s51, 14\ns_and_b32 s50, s50, 15\ns_lshl_b32 s50, s50, 4\ns_add_u32 s51, s51, s50")
    a("buffer_store_dwordx4 v[64:67], v2, s[40:43], s51 offen\nbuffer_store_dwordx4 v[68:71], v2, s[40:43], s51 offen offset:16")
    a("""v_lshrrev_b32 v72, 5, v1
v_bfe_u32 v73, v1, 4, 1
v_lshlrev_b32 v73, 9, v73
v_lshl_add_u32 v2, v72, 10, v73
v_lshl_add_u32 v3, v72, 12, v73
v_lshl_add_u32 v3, v8, 4, v3
v_lshrrev_b32 v72, 3, v8
v_lshl_add_u32 v2, v72, 8, v2
v_and_b32 v72, 7, v8
v_lshl_add_u32 v2, v72, 4, v2
s_lshl_b32 s58, s21, 20
s_lshl_b32 s59, s22, 17
s_add_u32 s58, s58, s59
s_lshl_b32 s59, s20, 15
s_add_u32 s58, s58, s59""")
    def tok_reads(u):
        return [f"ds_read_b128 {ar((((u & 1) * 2 + tl) * 16 + (u >> 1) * 4 + kl) * 4)}, v{TA[kl]} offset:{(u % 3) * 8192 + tl * 4096}" for kl in range(4) for tl in range(2)]
    for u in range(2):
        a.wait_tag(('t', u))
        for l in tok_reads(u): a(l)
    a.wait(lg=0); tok_issue(3)(a); tok_issue(4)(a)
    ex = []
    for u in range(2, 8):
        p = (u - 2) * 64 + 4
        ex.append((p, lambda a, u=u: a.wait_tag(('t', u))))
        ex += spread(tok_reads(u), p + 1, p + 25)
        if u + 3 < 8:
            ex.append((p + 34, "s_waitcnt lgkmcnt(2)"))
            L = tok_dma(u + 3)
            for j in range(8):
                def f(a, l=L[3 * j:3 * j + 3], last=(j == 7), u=u):
                    for x in l: a(x)
                    if last: a.tag(('t', u + 3))
                ex.append((p + 35 + 3 * j, f))
    def kstore():
        L = []; n = 0
        for tb in range(4):
            for dp in range(4):
                t = 48 + 4 * (n % 4); n += 1
                for hh in range(2):
                    b = XK + ((2 * dp + hh) * 4 + tb) * 4
                    L += [f"v_cvt_pk_bf16_f32 v{t+2*hh}, v{b}, v{b+1}", f"v_cvt_pk_bf16_f32 v{t+2*hh+1}, v{b+2}, v{b+3}"]
                L.append(f"s_add_u32 s59, s58, {(tb >> 1) * 16384 + (dp >> 1) * 4096}\nbuffer_store_dwordx4 {vr(t)}, v2, s[44:47], s59 offen offset:{(tb & 1) * 128 + (dp & 1) * 2048}{st}")
        return L
    def vstore(base, hf):
        L = []; n = 0
        for tp in range(2):
            for cb in range(4):
                t = 48 + 4 * (n % 4); n += 1; c = hf * 4 + cb
                for hh in range(2):
                    b = base + (cb * 4 + 2 * tp + hh) * 4
                    L += [f"v_cvt_pk_bf16_f32 v{t+2*hh}, v{b}, v{b+1}", f"v_cvt_pk_bf16_f32 v{t+2*hh+1}, v{b+2}, v{b+3}"]
                L.append(f"s_add_u32 s59, s58, {tp * 16384 + 8192}\nbuffer_store_dwordx4 {vr(t)}, v3, s[44:47], s59 offen offset:{(c >> 1) * 1024 + (c & 1) * 256}{st}")
        return L
    ex += spread(kstore(), 512 + 8, 768 - 8)
    ex += spread(vstore(YV, 0), 768 + 8, 1024 - 40)
    stamp(stamps, 1)(a)
    ex += [(256, stamp(stamps, 2)), (512, stamp(stamps, 3)), (768, stamp(stamps, 4))]
    g.run(ex)
    stamp(stamps, 5)(a)
    for l in vstore(XK, 1): a(l)
    if stamps: a.force_wait(vm=0)
    stamp(stamps, 6)(a); stamp_out(a, stamps, 0xf100000, 7)
    a.raw(f"END_{name}:\ns_endpgm")
    return a
if __name__ == "__main__":
    a = p1(); print(len(a.out), a.nops)
```

```python
from gen_common import *
import struct, math
def fb(x): return "0x%08x" % struct.unpack('<I', struct.pack('<f', x))[0]
LOG2E = math.log2(math.e)
S_ = (64, 96); P_ = (128, 144); NM = 160; E_ = 192
TS = 224; T_ = 228; L_ = 230; TM = 232; VQ = 234; TH = 236
VK, VV, VLK, VLV, VD = 2, 3, 4, 5, 6
SJ = (56, 57); SRCK, SRCV, WRK, WRV, KDST, VDST = 58, 59, 60, 61, 62, 63
THR, RET = 64, 86
def Sr(par, rho, i=0): return S_[par] + rho * 16 + i
def Pr(par, rho, f): return P_[par] + rho * 8 + f * 4
def Er(rho, i): return E_ + rho * 16 + i
def Oa(db, rho): return (db * 2 + rho) * 16
QKORD = [(r, d) for d in range(6) for r in range(2)] + [(0, 6), (0, 7), (1, 6), (1, 7)]

def qk_mf(par, cinit):
    return [f"{M32} {vr(Sr(par, r), 16)}, {ar(192 + 4 * d)}, {ar(128 + r * 32 + 4 * d)}, {vr(NM + 16 * r, 16) if (d == 0 and cinit) else vr(Sr(par, r), 16)}" for r, d in QKORD]
def pv_mf(par, order=None):
    order = order or [(f, db, r) for f in range(2) for db in range(4) for r in range(2)]
    return [f"{M32} {ar(Oa(db, r), 16)}, {ar(224 + 4 * (f * 4 + db))}, {vr(Pr(par, r, f))}, {ar(Oa(db, r), 16)}" for f, db, r in order]
def cvts(par, f):
    return [f"v_cvt_pk_bf16_f32 v{Pr(par, r, f) + q}, v{Er(r, 8 * f + 2 * q)}, v{Er(r, 8 * f + 2 * q + 1)}" for r in range(2) for q in range(4)]
def kreads(): return [f"ds_read_b128 {ar(192 + 4 * d)}, v{VK} offset:{d * 1024}" for d in range(8)]
def vreads(): return [f"ds_read_b128 {ar(224 + 4 * d)}, v{VV} offset:{d * 1024}" for d in range(8)]
def dmas(par):
    j = SJ[par]; L = []
    for src, wr, st in ((SRCV, WRV, 8192), (SRCK, WRK, 0)):
        for k in range(4):
            pre = ""
            if k == 0: pre = (f"s_xor_b32 s23, s{j}, 32768\ns_add_u32 m0, s23, s{VDST}\n" if st else f"s_add_u32 m0, s{j}, s{KDST}\n")
            post = f"\ns_add_u32 s{src}, s{src}, 32768\ns_cmp_eq_u32 s{src}, s{wr}\ns_cselect_b32 s{src}, {st}, s{src}\ns_cselect_b32 s{wr}, -1, s{wr}" if k == 3 else ""
            L.append(pre + f"buffer_load_dwordx4 v{VD}, s[40:43], s{src} offen offset:{k * 1024} lds" + post)
    return L
def slots(par):
    return f"s_add_u32 s{SJ[1-par]}, s{SJ[par]}, 16384\ns_and_b32 s{SJ[1-par]}, s{SJ[1-par]}, 0xffff\nv_add_u32 v{VK}, s{SJ[1-par]}, v{VLK}\nv_add_u32 v{VV}, s{SJ[par]}, v{VLV}"
def mask_init(par, src):
    L = []; n = 0
    for r in range(2):
        for i0 in range(0, 16, 2):
            c = [88 + 2 * ((n + k) % 4) for k in range(2)]; n += 2
            L.append("\n".join(f"v_cmp_le_i32 s[{c[k]}:{c[k]+1}], {((i0+k) & 3) + 8 * ((i0+k) >> 2)}, v{TH + r}" for k in range(2)))
            L.append("\n".join(f"v_cndmask_b32 v{Sr(par, r, i0+k)}, v{TM+1}, {src(r)}, s[{c[k]}:{c[k]+1}]" for k in range(2)))
    return L[:1] + [x for k in range(1, len(L) - 1, 2) for x in (L[k + 1], L[k])] + L[-1:]
def sm_fill(par, lo, hi):
    F = []; seq = [(r, 8 * f + i) for f in range(2) for r in range(2) for i in range(8)]
    st = (hi - lo) / 32.0
    for k, (r, i) in enumerate(seq):
        p = lo + k * st
        F.append((p, f"v_exp_f32 v{Er(r, i)}, v{Sr(par, r, i)}"))
        if i == 1: F.append((p + 1.5 * st, f"v_add_f32 v{T_ + r}, v{Er(r, 0)}, v{Er(r, 1)}"))
        elif i > 1: F.append((p + 1.5 * st, f"v_add_f32 v{T_ + r}, v{T_ + r}, v{Er(r, i)}"))
        if i & 1:
            if i < 8: F.append((p + 6.5 * st, f"v_cvt_pk_bf16_f32 v{Pr(par, r, 0) + i // 2}, v{Er(r, i - 1)}, v{Er(r, i)}"))
    F.append((hi + 1.2 * st, f"v_max_f32 v{TM}, v{T_}, v{T_ + 1}"))
    F.append((hi + 2.4 * st, f"v_cmp_lt_f32 vcc, s{THR}, v{TM}"))
    return F
def deferred(par, lo, hi):
    return spread([f"v_add_f32 v{L_}, v{L_}, v{T_}\nv_add_f32 v{L_+1}, v{L_+1}, v{T_+1}"] + cvts(par, 1), lo, hi)
stubs = []
def check(a, par, tag):
    a(f"s_cbranch_vccnz RX_{tag}"); a.raw(f"RR_{tag}:"); stubs.append((tag, par))
def body(a, par, tag, masked=False):
    F = [(-1, slots(par))] + deferred(1 - par, 0, 6)
    F.append((1.5, "s_waitcnt vmcnt(12)\ns_barrier"))
    F += spread(kreads(), 2, 14) + spread(vreads(), 17, 31) + spread(dmas(par), 3, 30)
    if masked:
        F.append((-0.5, f"v_subrev_u32 v{TH}, s67, v{VQ}\nv_subrev_u32 v{TH+1}, s67, v{VQ+1}\ns_add_u32 s67, s67, 64"))
        F += spread(mask_init(1 - par, lambda r: f"v{NM + 16 * r}"), 0, 15.9)
    F += sm_fill(par, 1.2, 29.0)
    weave(a, pv_mf(1 - par) + qk_mf(1 - par, not masked), F)
    check(a, par, tag)
def primed(fn, prev):
    t = A2(); body(t, prev, "dummy"); stubs.pop(); k = len(t.out); fn(t); return t, t.out[k:]
def rowmax(par):
    L = []
    for r in range(2):
        s = lambda i: f"v{Sr(par, r, i)}"; t = f"v{T_ + r}"
        L.append(f"v_max3_f32 {t}, {s(0)}, {s(1)}, {s(2)}")
        for i in range(3, 15, 2): L.append(f"v_max3_f32 {t}, {t}, {s(i)}, {s(i+1)}")
        L.append(f"v_max_f32 {t}, {t}, {s(15)}")
    for r in range(2): L.append(f"v_mov_b32 v{TS + r}, v{T_ + r}")
    for r in range(2): L.append(f"v_permlane32_swap_b32 v{T_ + r}, v{TS + r}")
    for r in range(2): L.append(f"v_max_f32 v{T_ + r}, v{T_ + r}, v{TS + r}")
    return L
def subm(par, r, reg): return [f"v_add_f32 v{Sr(par, r, i)}, v{Sr(par, r, i)}, v{reg}" for i in range(16)]
def rare(par):
    a = A2(); a.raw(f"RARE{par}:"); a("s_nop 15\ns_nop 15")
    for l in rowmax(par): a(l)
    for r in range(2):
        a(f"v_max_f32 v{T_ + r}, 0, v{T_ + r}\nv_sub_f32 v{TS + 2 * r}, 0, v{T_ + r}\nv_sub_f32 v{TS + 2 * r + 1}, 0, v{T_ + r}\nv_exp_f32 v{T_ + r}, v{TS + 2 * r}")
        for q in range(2):
            for l in subm(q, r, TS + 2 * r): a(l)
        for i in range(16): a(f"v_add_f32 v{NM + 16 * r + i}, v{NM + 16 * r + i}, v{TS + 2 * r}")
        a(f"v_mul_f32 v{L_ + r}, v{L_ + r}, v{T_ + r}")
        for db in range(4):
            for i in range(16): a(f"v_accvgpr_read_b32 v{E_ + i}, a{Oa(db, r) + i}")
            for i in range(16): a(f"v_mul_f32 v{E_ + i}, v{E_ + i}, v{T_ + r}")
            for i in range(16): a(f"v_accvgpr_write_b32 a{Oa(db, r) + i}, v{E_ + i}")
    for p, l in sorted(sm_fill(par, 0, 32), key=lambda x: x[0])[:-2]: a(l)
    a(f"s_nop 3\ns_setpc_b64 s[{RET}:{RET+1}]")
    return a.out

def p2(name="p2_kernel", stamps=False, pf=True, st=""):
    a = A2(); header(a, name); del stubs[:]
    a("s_load_dwordx2 s[4:5], s[0:1], 16\ns_load_dwordx4 s[8:11], s[0:1], 56\ns_load_dwordx2 s[12:13], s[0:1], 96\ns_load_dwordx2 s[88:89], s[0:1], 40\ns_load_dwordx2 s[92:93], s[0:1], 72")
    ids(a)
    stamp(stamps, 0)(a)
    a("s_and_b32 s18, s20, 1\ns_lshr_b32 s19, s20, 1")
    srd(a, 24, 12, 2 * MB, WS_XN); srd(a, 28, 4, 4 * MB); srd(a, 32, 8, 512 * 2752); srd(a, 36, 10, 512 * 2752)
    srd(a, 44, 12, 8 * MB, WS_QB); srd(a, 48, 12, 128 * TOKROW, WS_TOK)
    a(f"s_lshl_b32 s23, s21, 20\ns_add_u32 s23, s23, {WS_KV}\ns_add_u32 s40, s12, s23\ns_addc_u32 s41, s13, 0\ns_sub_u32 s16, 15, s22\ns_add_u32 s42, s16, 1\ns_lshl_b32 s42, s42, 16\ns_mov_b32 s43, 0x20000")
    a("s_cmp_eq_u32 s19, 0\ns_cselect_b32 s17, s22, s16\ns_lshl_b32 s17, s17, 3\ns_lshl_b32 s23, s18, 2\ns_add_u32 s17, s17, s23")
    a("v_lshlrev_b32 v7, 4, v1\ns_lshl_b32 s52, s17, 14")
    wdma_voff(a, 10, 8192, 9); wdma_voff(a, 8, 2752, 9)
    a("s_mul_i32 s53, s21, 96\ns_lshl_b32 s54, s21, 6\ns_add_u32 s54, s54, 704\ns_cmp_lt_u32 s21, 22\ns_cselect_b32 s53, s53, s54\ns_cselect_b32 s14, 0, 0x7000000")
    a("s_lshl_b32 s55, s21, 8\ns_lshl_b32 s15, s20, 10\ns_add_u32 s15, s15, 98304")
    def wdma(slot, blk, sr, vo, base, off):
        return [f"s_add_u32 m0, s15, {slot * 16384 + blk * 4096}", f"s_add_u32 s23, s{base}, {off}", f"buffer_load_dwordx4 v{vo}, s[{sr}:{sr+3}], s23 offen lds"]
    GA, UA, QA, QB = 64, 112, 160, 64
    stg = []
    for s_ in range(8):
        fr = []; dm = []
        for b in range(4):
            ks = 2 * s_ + (b >> 1); up = b & 1
            dm += wdma(s_ % 4, b, 36 if up else 32, 8, 53, ks * 32 * 2752)
            for cb in range(3): fr.append((b, cb, ks, (lambda tb, c=cb, base=(UA if up else GA): base + (c * 4 + tb) * 4), True))
        stg.append(dict(frags=fr, dma=dm))
    for hf in range(2):
        for s_ in range(4):
            fr = []; dm = []
            for b in range(4):
                ks = 4 * s_ + b
                dm += wdma(len(stg) % 4, b, 28, 10, 55, ks * 32 * 8192 + hf * 128)
                for cb in range(4): fr.append((b, cb, ks, (lambda tb, c=cb, base=(QB if hf else QA): base + (c * 4 + tb) * 4), True))
            stg.append(dict(frags=fr, dma=dm))
    g = Gemm(a, stg, (11, 12))
    def tok(ks0, ks1):
        for ks in range(ks0, ks1):
            for tb in range(4):
                a(f"s_add_u32 s23, s52, {tb * 16384 + (ks >> 2) * 4096}\nbuffer_load_dwordx4 {ar((tb * 16 + ks) * 4)}, v7, s[24:27], s23 offen offset:{(ks & 3) * 1024}")
    g.issue(0)(a); tok(0, 2); g.issue(1)(a); tok(2, 4); g.issue(2)(a); tok(4, 12)
    tr_addr(a, 11, 12, 98304, 9)
    a(f"""s_lshl_b32 s23, s19, 13
v_add_u32 v{VLK}, s23, v7
v_add_u32 v{VLV}, 0x10000, v{VLK}
s_lshl_b32 s23, s19, 13
s_lshl_b32 s3, s18, 12
s_add_u32 s{KDST}, s23, s3
s_add_u32 s{VDST}, s{KDST}, 0x10000
s_lshl_b32 s23, s19, 14
s_add_u32 s23, s23, s3
v_add_u32 v{VD}, s23, v7
s_add_u32 s{WRK}, s22, 1
s_lshl_b32 s{WRK}, s{WRK}, 16
s_add_u32 s{WRV}, s{WRK}, 8192
s_mov_b32 s{SRCK}, 0
s_mov_b32 s{SRCV}, 8192
s_mov_b32 s{THR}, {fb(2.0 ** 30)}
v_mov_b32 v{TM+1}, {fb(-1e30)}""")
    def kv_first(src, wr, stv, dst, slot):
        L = []
        for k in range(4):
            l = f"buffer_load_dwordx4 v{VD}, s[40:43], s{src} offen offset:{k * 1024} lds"
            if k == 0: l = f"s_add_u32 m0, s{dst}, {slot * 16384}\n" + l
            if k == 3: l += f"\ns_add_u32 s{src}, s{src}, 32768\ns_cmp_eq_u32 s{src}, s{wr}\ns_cselect_b32 s{src}, {stv}, s{src}\ns_cselect_b32 s{wr}, -1, s{wr}"
            L.append(l)
        return "\n".join(L)
    a(f"""s_mul_i32 s3, s17, {TOKROW}
s_lshr_b32 s23, s53, 5
v_lshrrev_b32 v15, 5, v1
v_lshlrev_b32 v15, 10, v15
v_bfe_u32 v9, v1, 4, 1
v_lshl_add_u32 v15, v9, 9, v15
v_and_b32 v9, 15, v1
v_lshl_add_u32 v15, v9, 4, v15""")
    for cb in range(3):
        a(f"s_add_u32 s54, s23, {cb}\ns_lshr_b32 s{70+cb}, s54, 1\ns_lshl_b32 s{70+cb}, s{70+cb}, 10\ns_and_b32 s54, s54, 1\ns_lshl_b32 s54, s54, 3\ns_add_u32 s{70+cb}, s{70+cb}, s54\ns_add_u32 s{70+cb}, s{70+cb}, s3")
    a(f"""s_add_u32 s72, s72, s14
s_lshl_b32 s23, s18, 14
s_add_u32 s54, s23, 32768
s_lshl_b32 s3, s2, 15
s_add_u32 s3, s3, s23
s_cmp_eq_u32 s19, 0
s_cselect_b32 s54, s54, 98304
s_cselect_b32 s73, 0x7000000, s3
v_add_u32 v14, s54, v15""")
    c0 = -2 * LOG2E * math.sqrt(2 / math.pi)
    for k, v in enumerate((c0, c0 * 0.044715, 1.0, LOG2E * 128 ** -0.5)): a(f"s_mov_b32 s{4+2*k}, {fb(v)}\ns_mov_b32 s{5+2*k}, {fb(v)}")
    a("v_mov_b32 v62, s4\nv_mov_b32 v63, s4")
    ex = [(8, lambda a: tok(12, 14)), (30, lambda a: tok(14, 16))]
    for k, (s_, w_, v_, d_, sl) in enumerate(((SRCK, WRK, 0, KDST, 0), (SRCV, WRV, 8192, VDST, 0), (SRCK, WRK, 0, KDST, 1), (SRCV, WRV, 8192, VDST, 1))):
        ex.append((48 * (k + 3) + 30.5, kv_first(s_, w_, v_, d_, sl)))
    def gelu():
        L = []; n = 0
        for cb in range(3):
            for tb in range(4):
                gq = GA + (cb * 4 + tb) * 4; uq = UA + (cb * 4 + tb) * 4; t = 48 + 6 * (n & 1); n += 1
                K4 = range(4)
                L += [f"v_mul_f32 v{t+k}, v{gq+k}, v{gq+k}" for k in K4]
                L += [f"v_fma_f32 v{t+k}, v{t+k}, s6, v62" for k in K4]
                L += [f"v_mul_f32 v{t+k}, v{t+k}, v{gq+k}" for k in K4]
                for k in K4: L += [f"v_exp_f32 v{t+k}, v{t+k}", f"v_mul_f32 v{gq+k}, v{gq+k}, v{uq+k}"]
                L += [f"v_add_f32 v{t+k}, 1.0, v{t+k}" for k in K4]
                L += [f"v_rcp_f32 v{t+k}, v{t+k}" for k in K4]
                L += [f"v_mul_f32 v{gq+k}, v{gq+k}, v{t+k}" for k in K4]
                L += [f"v_cvt_pk_bf16_f32 v{t+4}, v{gq}, v{gq+1}", f"v_cvt_pk_bf16_f32 v{t+5}, v{gq+2}, v{gq+3}"]
                L.append(f"s_add_u32 s23, s{70+cb}, {tb * TOKROW + 128 * 1024}\nbuffer_store_dwordx2 {vr(t+4, 2)}, v7, s[48:51], s23 offen{st}")
        return L
    def qout(base, hf):
        L = []; n = 0
        for tb in range(4):
            for d2 in range(2):
                t = 48 + 4 * (n % 3); n += 1; off = (tb >> 1) * 8192 + (hf * 2 + d2) * 2048 + (tb & 1) * 256
                for hh in range(2):
                    b = base + ((2 * d2 + hh) * 4 + tb) * 4
                    L += [f"v_mul_f32 v{b+k}, s10, v{b+k}" for k in range(4)]
                    L += [f"v_cvt_pk_bf16_f32 v{t+2*hh+k}, v{b+2*k}, v{b+2*k+1}" for k in range(2)]
                L.append(f"ds_write_b128 v14, {vr(t)} offset:{off}")
                L.append(f"s_add_u32 s23, s73, {off & ~4095}\nbuffer_store_dwordx4 {vr(t)}, v15, s[44:47], s23 offen offset:{off & 4095}")
        return L
    ex += spread(gelu(), 384 + 6, 640 - 4)
    ex += spread(qout(QA, 0), 768 - 10, 896 - 8)
    if pf:
        a(f"s_mov_b32 s90, {4 * MB}\ns_mov_b32 s91, 0x20000\ns_mov_b32 s94, {1376 * 1024}\ns_mov_b32 s95, 0x20000\ns_lshl_b32 s68, s2, 2\ns_add_u32 s68, s68, s20\ns_lshl_b32 s69, s68, 11\ns_lshl_b32 s68, s68, 12")
        ex += spread([f"buffer_load_dwordx4 v[240:243], v7, s[88:91], s68 offen offset:{k * 1024}" for k in range(4)] + [f"buffer_load_dwordx4 v[240:243], v7, s[92:95], s69 offen offset:{k * 1024}" for k in range(2)], 715, 740)
    ex += [(0, stamp(stamps, 5)), (384, stamp(stamps, 6)), (640, stamp(stamps, 7))]
    g.run(ex)
    stamp(stamps, 1)(a)
    for l in qout(QB, 1): a(l)
    a.force_wait(0, 0); a("s_barrier")
    a(f"s_lshl_b32 s23, s18, 14\ns_add_u32 s23, s23, 32768\ns_lshl_b32 s3, s19, 13\ns_add_u32 s54, s23, s3\nv_add_u32 v8, s54, v7\nv_xor_b32 v9, 0x2000, v8\nv_mov_b32 v{VK}, v{VLK}")
    for r in range(2):
        for d in range(8): a(f"ds_read_b128 {ar(128 + r * 32 + 4 * d)}, v{8 + r} offset:{d * 1024}")
    for l in kreads(): a(l)
    a(f"""v_and_b32 v8, 31, v1
v_lshrrev_b32 v9, 5, v1
v_lshlrev_b32 v9, 2, v9
v_sub_u32 v8, v8, v9
s_lshl_b32 s23, s18, 6
v_add_u32 v238, s23, v8
s_lshl_b32 s3, s19, 6
s_sub_u32 s23, s23, s3
s_add_u32 s23, s23, 32
v_add_u32 v239, s23, v8
s_mov_b32 s74, s22
s_mov_b32 s75, 0
s_mov_b32 s{SJ[0]}, 0
s_lshl_b32 s23, s19, 13
v_add_u32 v10, s23, v7
v_xor_b32 v11, 0x2000, v10
s_lshl_b32 s73, s2, 15
s_lshl_b32 s23, s18, 14
s_add_u32 s73, s73, s23
s_lshl_b32 s23, s20, 13
s_add_u32 s23, s23, 0x20000
v_add_u32 v12, s23, v7
v_xor_b32 v13, 0x4000, v12
v_lshlrev_b32 v14, 3, v1
s_lshl_b32 s23, s20, 9
s_add_u32 s23, s23, 0x10000
v_add_u32 v14, s23, v14
v_bfe_u32 v8, v1, 4, 1
s_mov_b32 s23, {TOKROW}
v_mul_lo_u32 v15, v8, s23
v_lshrrev_b32 v8, 5, v1
v_lshl_add_u32 v15, v8, 8, v15
v_and_b32 v8, 15, v1
v_lshl_add_u32 v15, v8, 4, v15""")
    a.force_wait(lg=0); a("s_barrier")
    a(kv_first(SRCK, WRK, 0, KDST, 2)); a(kv_first(SRCK, WRK, 0, KDST, 3))
    stamp(stamps, 2)(a)
    a.raw("QBLK:")
    a(f"s_lshl_b32 s23, s74, 7\nv_add_u32 v{VQ}, s23, v238\nv_add_u32 v{VQ+1}, s23, v239\ns_add_u32 s67, s23, 0")
    a(slots(0))
    a(f"v_mov_b32 v{TH}, v{VQ}\nv_mov_b32 v{TH+1}, v{VQ+1}")
    for l in mask_init(0, lambda r: "0"): a(l)
    a(f"v_subrev_u32 v{TH}, 64, v{VQ}\nv_subrev_u32 v{TH+1}, 64, v{VQ+1}")
    a.force_wait(vm=8); a("s_barrier")
    F = spread(mask_init(1, lambda r: "0"), 0, 15.9)
    kr = kreads()
    for d in range(8): F.append((max(i for i, (r, dd) in enumerate(QKORD) if dd == d) + 0.5, kr[d]))
    F += spread(dmas(0), 1, 30) + spread(vreads(), 17, 31)
    F += spread([f"v_accvgpr_write_b32 a{i}, 0" for i in range(128)], 0, 32)
    L = rowmax(0)
    for r in range(2):
        L.append(f"v_cmp_lt_f32 vcc, v{T_ + r}, v{TM}"); L.append(f"v_cndmask_b32 v{T_ + r}, v{T_ + r}, 0, vcc")
    for r in range(2): L += [f"v_sub_f32 v{NM + 16 * r + i}, 0, v{T_ + r}" for i in range(16)]
    for r in range(2): L += subm(0, r, NM + 16 * r)
    F += [(16.5, f"v_mov_b32 v{TM}, {fb(-1e20)}\nv_mov_b32 v{L_}, 0\nv_mov_b32 v{L_+1}, 0")] + spread(L, 17, 31.9)
    weave(a, qk_mf(0, False) + qk_mf(1, False), F)
    G = sorted(sm_fill(0, 0, 32) + spread(subm(1, 0, NM) + subm(1, 1, NM + 16), 8, 30), key=lambda x: x[0])
    for p, l in G: a(l)
    a.force_wait(lg=0)
    check(a, 0, "h")
    a("s_cmp_eq_u32 s74, 0\ns_cbranch_scc1 LAST\ns_sub_u32 s54, s74, 1\ns_cmp_eq_u32 s54, 0\ns_cbranch_scc1 MASKED")
    a.raw("LOOP:")
    t, o = primed(lambda t: (body(t, 1, "l1"), body(t, 0, "l0")), 0); a.out += o
    a.raw("s_sub_u32 s54, s54, 1\ns_cmp_lg_u32 s54, 0\ns_cbranch_scc1 LOOP\nMASKED:")
    t, o = primed(lambda t: (body(t, 1, "m1", True), body(t, 0, "m0", True)), 0); a.out += o
    a.raw("LAST:")
    def last(a):
        F = [(-1, slots(1))] + deferred(0, 0, 6) + [(1.5, "s_waitcnt vmcnt(12) lgkmcnt(0)\ns_barrier")]
        F += spread(kreads(), 2, 8) + spread(dmas(1), 3, 15.9)
        vrd = vreads()
        for k in range(8): F.append((2 * k + 1.6, vrd[k]))
        F += sm_fill(1, 1.2, 14.5)
        weave(a, pv_mf(0), F)
        check(a, 1, "t")
        F = [(-1, x) for p, x in deferred(1, 0, 1)[:1]]
        cv = cvts(1, 1); F += spread(cv[4:], -1, -0.1) + spread(cv[:4], 0, 3)
        for r in range(2):
            for d in range(8): F.append((0.5 + r * 4 + d * 0.5, f"buffer_load_dwordx4 {ar(128 + r * 32 + 4 * d)}, v{10 + r}, s[44:47], s73 offen offset:{(d & 3) * 1024}" if d < 4 else
                                         f"s_add_u32 s23, s73, 4096\nbuffer_load_dwordx4 {ar(128 + r * 32 + 4 * d)}, v{10 + r}, s[44:47], s23 offen offset:{(d & 3) * 1024}"))
        L = []
        for r in range(2): L.append(f"v_mov_b32 v{TS + r}, v{L_ + r}")
        for r in range(2): L.append(f"v_permlane32_swap_b32 v{L_ + r}, v{TS + r}")
        for r in range(2): L.append(f"v_add_f32 v{TS + 2 * r + 1}, v{L_ + r}, v{TS + r}" if r else f"v_add_f32 v{L_}, v{L_}, v{TS}")
        L += [f"v_sub_f32 v{T_}, 0, v{NM}", f"v_sub_f32 v{TS + 2}, 0, v{NM + 16}", f"v_cmp_lt_f32 vcc, 0, v{L_}", f"v_cndmask_b32 v{T_}, v{TM+1}, v{T_}, vcc",
              f"v_cmp_lt_f32 vcc, 0, v{TS + 3}", f"v_cndmask_b32 v{TS + 2}, v{TM+1}, v{TS + 2}, vcc",
              f"s_xor_b32 s23, s{SJ[0]}, 32768\nv_add_u32 v8, s23, v14", f"ds_write_b64 v8, {vr(TS + 2, 2)}", "v_xor_b32 v8, 0x400, v8"]
        F += spread(L, 1, 7.9)
        L = []
        for db in range(4):
            for f in range(2):
                e = E_ + 8 * ((db * 2 + f) & 3); pk = 64 + 4 * (db * 2 + f)
                L += [f"v_accvgpr_read_b32 v{e + i}, a{Oa(db, 1) + 8 * f + i}" for i in range(8)]
                L += [f"v_cvt_pk_bf16_f32 v{pk + q}, v{e + 2 * q}, v{e + 2 * q + 1}" for q in range(4)]
                L.append(f"ds_write_b128 v12, {vr(pk)} offset:{(db * 2 + f) * 1024}")
        F += spread(L, 8.5, 17)
        weave(a, pv_mf(1, [(f, db, 1) for db in range(4) for f in range(2)] + [(f, db, 0) for db in range(4) for f in range(2)]), F)
        a.force_wait(lg=0); a("s_barrier")
        a(f"ds_read_b64 {vr(TS, 2)}, v8")
        for k in range(8): a(f"ds_read_b128 {vr(96 + 4 * k)}, v13 offset:{k * 1024}")
        a(f"""v_max_f32 v{TM}, v{T_}, v{TS}
v_sub_f32 v{T_}, v{T_}, v{TM}
v_sub_f32 v{TS}, v{TS}, v{TM}
v_exp_f32 v{T_}, v{T_}
v_exp_f32 v{TS}, v{TS}
v_mul_f32 v{L_}, v{L_}, v{T_}
v_fmac_f32 v{L_}, v{TS}, v{TS+1}
v_rcp_f32 v{L_}, v{L_}
v_mul_f32 v{T_}, v{T_}, v{L_}
v_mul_f32 v{TS}, v{TS}, v{L_}
v_mov_b32 v{T_+1}, v{T_}
v_mov_b32 v{TS+1}, v{TS}
s_lshl_b32 s23, s74, 3
s_lshl_b32 s3, s20, 1
s_and_b32 s3, s3, 2
s_or_b32 s3, s3, s19
s_lshl_b32 s3, s3, 1
s_add_u32 s23, s23, s3
s_mul_i32 s23, s23, {TOKROW}
s_lshl_b32 s3, s21, 12
s_add_u32 s3, s3, s23""")
        for k in range(8):
            db, f = k >> 1, k & 1; e = E_ + 16 * (k & 1); pk = 64 + 4 * k
            for i in range(8): a(f"v_accvgpr_read_b32 v{e + i}, a{Oa(db, 0) + 8 * f + i}")
            for q in range(4): a(f"v_lshlrev_b32 v{e + 8 + 2 * q}, 16, v{96 + 4 * k + q}\nv_and_b32 v{e + 9 + 2 * q}, 0xffff0000, v{96 + 4 * k + q}")
            for q in range(4): a(f"v_pk_mul_f32 {vr(e + 2 * q, 2)}, {vr(e + 2 * q, 2)}, {vr(T_, 2)}")
            for q in range(4): a(f"v_pk_fma_f32 {vr(e + 2 * q, 2)}, {vr(e + 8 + 2 * q, 2)}, {vr(TS, 2)}, {vr(e + 2 * q, 2)}")
            for q in range(4): a(f"v_cvt_pk_bf16_f32 v{pk + q}, v{e + 2 * q}, v{e + 2 * q + 1}")
            a(f"buffer_store_dwordx4 {vr(pk)}, v15, s[48:51], s3 offen offset:{db * 1024 + f * 512}{st}")
    t, o = primed(last, 0); a.out += o
    if stamps: a.raw("s_cmp_eq_u32 s75, 0\ns_cbranch_scc0 ST4\ns_memtime s[82:83]\nST4:\ns_memtime s[84:85]\ns_waitcnt lgkmcnt(0)")
    a.raw("s_nop 1\ns_mov_b32 s74, s16\ns_add_u32 s75, s75, 1\ns_cmp_eq_u32 s75, 1\ns_cbranch_scc1 QBLK")
    stamp_out(a, stamps, 0xf000000, 8)
    a.raw(f"END_{name}:\ns_endpgm")
    for tag, par in stubs: a.raw(f"RX_{tag}:\ns_call_b64 s[{RET}:{RET+1}], RARE{par}\ns_branch RR_{tag}")
    for par in range(2): a.out += rare(par)
    return a
if __name__ == "__main__":
    a = p2(); print(len(a.out), a.nops)
```
